```python
import torch

def _softmax(x, axis=-1):
    return torch.softmax(x, dim=axis)

def _gelu(x):
    return torch.nn.functional.gelu(x, approximate='tanh')

def _silu(x):
    return torch.nn.functional.silu(x)

def _sigmoid(x):
    return torch.sigmoid(x)

def _layernorm(x, axis=-1, eps=1e-05):
    m = x.mean(dim=axis, keepdim=True)
    v = x.var(dim=axis, keepdim=True, unbiased=False)
    return (x - m) / torch.sqrt(v + eps)

def _scatter_add(tgt, idx, src, axis=0):
    return tgt.clone().index_add_(axis, idx, src)

def _segment_sum(src, seg, n):
    out = torch.zeros((n,) + src.shape[1:], dtype=src.dtype)
    return out.index_add_(0, seg, src)

def _pad(x, pw):
    flat = tuple((v for pair in reversed(pw) for v in pair))
    return torch.nn.functional.pad(x, flat)
kernel_name = 'sequential_preLN__spectral_gfnet__mixer_gmlp__prompt'

def setup_inputs():

    _w = lambda a: (lambda t: t.to(torch.bfloat16) if t.is_floating_point() else t)(torch.as_tensor(a))

    def _A_setup():
        B, S, D = (1, 2048, 1024)
        Df = D // 2 + 1
        return {'x': _w((lambda *s: torch.randn(*s, dtype=torch.bfloat16) * 0.05)(B, S, D)), 'w_r': _w((lambda *s: torch.randn(*s, dtype=torch.bfloat16) * 0.4)(S, Df) * 0.02), 'w_i': _w((lambda *s: torch.randn(*s, dtype=torch.bfloat16) * 0.4)(S, Df) * 0.02)}
    _A_in = _A_setup()

    def _B_setup():
        B, S, D, F = (1, 2048, 1024, 3584)
        Fh = F // 2
        return {'x': _w((lambda *s: torch.randn(*s, dtype=torch.bfloat16) * 0.05)(B, S, D)), 'w_in': _w((lambda *s: torch.randn(*s, dtype=torch.bfloat16) * 0.4)(D, 2 * Fh)), 'w_sp': _w(0.01 * (lambda *s: torch.randn(*s, dtype=torch.bfloat16) * 0.4)(S, S)), 'b_sp': _w(1.0 + 0.01 * (lambda *s: torch.randn(*s, dtype=torch.bfloat16) * 0.05)(S)), 'w_out': _w((lambda *s: torch.randn(*s, dtype=torch.bfloat16) * 0.05)(Fh, D))}
    _B_in = _B_setup()
    return {'A_x': _A_in['x'], 'A_w_r': _A_in['w_r'], 'A_w_i': _A_in['w_i'], 'B_x': _B_in['x'], 'B_w_in': _B_in['w_in'], 'B_w_sp': _B_in['w_sp'], 'B_b_sp': _B_in['b_sp'], 'B_w_out': _B_in['w_out']}

def reference(A_x, A_w_r, A_w_i, B_x, B_w_in, B_w_sp, B_b_sp, B_w_out):

    def _A_ref(x, w_r, w_i):
        B, S, D = x.shape
        X = (lambda x, axes=(-2, -1): torch.fft.rfft2(x.float(), dim=axes))(x, axes=(-2, -1))
        W = w_r + 1j * w_i
        X = X * W
        y = (lambda x, s, axes=(-2, -1): torch.fft.irfft2(x, s=s, dim=axes).to(torch.bfloat16))(X, (S, D), axes=(-2, -1))
        return y

    def _B_ref(x, w_in, w_sp, b_sp, w_out):
        B, S, D = x.shape
        F = w_in.shape[-1]
        Fh = F // 2
        z = _gelu(torch.einsum('bsd,df->bsf', x, w_in))
        z1 = z[..., :Fh].clone()
        z2 = _layernorm(z[..., Fh:], axis=-1)
        g = torch.einsum('ts,bsf->btf', w_sp, z2) + b_sp[None, :, None]
        return torch.einsum('bsf,fd->bsd', z1 * g, w_out)
    x = A_x
    h = x + _A_ref(_layernorm(x, axis=-1), A_w_r, A_w_i)
    h2 = h + _B_ref(_layernorm(h, axis=-1), B_w_in, B_w_sp, B_b_sp, B_w_out)
    return h2
```

```python
KD = '''.p2align 6
.amdhsa_kernel {name}
  .amdhsa_next_free_vgpr {vgpr}
  .amdhsa_next_free_sgpr {sgpr}
  .amdhsa_accum_offset {acc}
  .amdhsa_group_segment_fixed_size 0
  .amdhsa_kernarg_size 88
  .amdhsa_user_sgpr_count 2
  .amdhsa_user_sgpr_kernarg_segment_ptr 1
  .amdhsa_system_sgpr_workgroup_id_x 1
  .amdhsa_float_denorm_mode_32 3
.end_amdhsa_kernel
'''
import re
class Asm:
    def __init__(self):
        self.l = []
        self.prot = set()
    def clear_prot(self): self.prot = set()
    def _check(self, x):
        m = re.match(r'(s_\w+|v_readfirstlane_b32|v_readlane_b32|v_cmp\w+)\s+(s\[(\d+):(\d+)\]|s(\d+))', x)
        if not m: return
        op = m.group(1)
        if op.startswith(('s_cmp', 's_bitcmp', 's_waitcnt', 's_cbranch', 's_setprio', 's_sleep')): return
        regs = range(int(m.group(3)), int(m.group(4)) + 1) if m.group(3) else [int(m.group(5))]
        for r in regs:
            assert r not in self.prot, f'write to protected sgpr s{r}: {x}'
    def __call__(self, s=''):
        for x in s.split('\n'):
            x = x.strip()
            if x:
                self._check(x)
                self.l.append(x if x.endswith(':') or x.startswith('.') else '  ' + x)
    def text(self): return '\n'.join(self.l) + '\n'

def module(kernels, header=''):
    s = header
    for k in kernels:
        s += f"; @launch kernel={k['name']} grid=({k['grid']},1,1) block=({k['block']},1,1) lds={k['lds']}\n"
    s += '.amdgcn_target "amdgcn-amd-amdhsa--gfx950"\n.text\n'
    seen = []
    for k in kernels:
        if k['name'] in seen: continue
        seen.append(k['name'])
        s += f".globl {k['name']}\n.p2align 8\n.type {k['name']},@function\n{k['name']}:\n" + k['body']
    s += '.section .rodata,"a"\n'
    seen = []
    for k in kernels:
        if k['name'] in seen: continue
        seen.append(k['name'])
        s += KD.format(name=k['name'], vgpr=k.get('vgpr', 256), sgpr=k.get('sgpr', 102), acc=k.get('acc', 256))
    return s

def srd(a, dst, base, nbytes):
    a(f's_mov_b32 s{dst}, s{base}')
    a(f's_and_b32 s{dst+1}, s{base+1}, 0xffff')
    a(f's_mov_b32 s{dst+2}, {nbytes}')
    a(f's_mov_b32 s{dst+3}, 0x20000')
    a.prot.update(range(dst, dst+4))
```

```python
from asmlib import Asm, srd, module
MB = 1 << 20
WS_XD, WS_YD, WS_WT, WS_H, WS_HN = 0, 4*MB, 8*MB, 12*MB, 16*MB
WS_Z1, WS_Z2N, WS_P, WS_ST, WS_DIAG = 20*MB, 28*MB, 36*MB, 44*MB, 48*MB
SZ_Z = 2048*1792*2
KA = dict(x=0, wr=8, wi=16, bx=24, win=32, wsp=40, bsp=48, wout=56, out=64, dbg=72, ws=80)

def srd_ws(a, dst, wsbase, off, nbytes):
    a(f's_add_u32 s{dst}, s{wsbase}, {off}')
    a(f's_addc_u32 s{dst+1}, s{wsbase+1}, 0')
    a(f's_and_b32 s{dst+1}, s{dst+1}, 0xffff')
    a(f's_mov_b32 s{dst+2}, {nbytes}')
    a(f's_mov_b32 s{dst+3}, 0x20000')
    a.prot.update(range(dst, dst+4))

def interleave(main, fill, start=0, per=1):
    out = []
    fi = 0
    for i, m in enumerate(main):
        out.append(m)
        if i >= start:
            for _ in range(per):
                if fi < len(fill):
                    out.extend(fill[fi] if isinstance(fill[fi], list) else [fill[fi]]); fi += 1
    while fi < len(fill):
        out.extend(fill[fi] if isinstance(fill[fi], list) else [fill[fi]]); fi += 1
    return out

def stamp(a, sreg):
    a(f's_memtime s[{sreg}:{sreg+1}]')

WS_WINP, WS_WOUTP = 52*MB, 60*MB
SZ_WINP, SZ_WOUTP = 1024*3584*2, 1792*1024*2

def rr(a, chains, gap=3):
    n = max(len(c) for c in chains)
    for i in range(n):
        cnt = 0
        for c in chains:
            if i < len(c): a(c[i]); cnt += 1
        if i < n - 1 and cnt < gap: a(f's_nop {gap - cnt - 1}')

def reduce_chain(v):
    return [f'v_add_f32_dpp v{v}, v{v}, v{v} row_ror:8 row_mask:0xf bank_mask:0xf',
            f'v_add_f32_dpp v{v}, v{v}, v{v} row_ror:4 row_mask:0xf bank_mask:0xf',
            f'v_add_f32_dpp v{v}, v{v}, v{v} row_ror:2 row_mask:0xf bank_mask:0xf',
            f'v_add_f32_dpp v{v}, v{v}, v{v} row_ror:1 row_mask:0xf bank_mask:0xf',
            f'v_add_f32_dpp v{v}, v{v}, v{v} row_bcast:15 row_mask:0xa bank_mask:0xf',
            f'v_add_f32_dpp v{v}, v{v}, v{v} row_bcast:31 row_mask:0xc bank_mask:0xf']

def fconst(x):
    import struct
    return '0x%08x' % struct.unpack('<I', struct.pack('<f', x))[0]

def gen_cos_pairs(a, dsts, angle_fn, t0, t1):
    for i, d in enumerate(dsts):
        angle_fn(2*i, t0); angle_fn(2*i+1, t1)
        a(f'v_cos_f32 v{t0}, v{t0}'); a(f'v_cos_f32 v{t1}, v{t1}')
        a('s_nop 0')
        a(f'v_cvt_pk_bf16_f32 v{d}, v{t0}, v{t1}')
```

```python
from gen_common import *

EPS = 1e-5
MF32 = 'v_mfma_f32_32x32x16_bf16'

def mf(a, d, x, y, first=False):
    a(f'{MF32} v[{d}:{d+15}], v[{x}:{x+3}], v[{y}:{y+3}], ' + ('0' if first else f'v[{d}:{d+15}]'))

def lin_cos(a, dsts, offs, vstep, vbase, add, t0, t1):
    for i, d in enumerate(dsts):
        for k, t in ((2*i, t0), (2*i+1, t1)):
            a(f'v_mov_b32 v{t}, {fconst(float(offs[k]))}')
            a(f'v_fma_f32 v{t}, v{t}, v{vstep}, v{vbase}')
            if add: a(f'v_add_f32 v{t}, {fconst(add)}, v{t}')
        a(f'v_cos_f32 v{t0}, v{t0}'); a(f'v_cos_f32 v{t1}, v{t1}')
        a('s_nop 0')
        a(f'v_cvt_pk_bf16_f32 v{d}, v{t0}, v{t1}')

def sign_mask(a, dst, vL, bit):
    a(f'v_bfe_u32 v{dst}, v{vL}, {bit}, 1'); a(f'v_sub_u32 v{dst}, 0, v{dst}'); a(f'v_and_b32 v{dst}, 0x80008000, v{dst}')

def twiddle_tab(a, TC, TS, offs, vstep, vbase, t0, neg, scale=None):
    for rho in range(16):
        a(f'v_mov_b32 v{t0}, {fconst(float(offs[rho]))}')
        a(f'v_fma_f32 v{t0}, v{t0}, v{vstep}, v{vbase}')
        a(f'v_cos_f32 v{TC+rho}, v{t0}')
        a(f'v_sin_f32 v{TS+rho}, v{t0}')
    sc = 1.0 if scale is None else scale
    for rho in range(16):
        if scale is not None: a(f'v_mul_f32 v{TC+rho}, {fconst(sc)}, v{TC+rho}')
        if neg or scale is not None: a(f'v_mul_f32 v{TS+rho}, {fconst(-sc if neg else sc)}, v{TS+rho}')

def twiddle_apply(a, DR, DI, TC, TS, TR, TI, PR, PI):
    for p in range(8):
        o = 2*p
        a(f'v_pk_mul_f32 v[{TR+o}:{TR+o+1}], v[{DR+o}:{DR+o+1}], v[{TC+o}:{TC+o+1}]')
        a(f'v_pk_mul_f32 v[{TI+o}:{TI+o+1}], v[{DI+o}:{DI+o+1}], v[{TC+o}:{TC+o+1}]')
        a(f'v_pk_fma_f32 v[{TR+o}:{TR+o+1}], v[{DI+o}:{DI+o+1}], v[{TS+o}:{TS+o+1}], v[{TR+o}:{TR+o+1}] neg_lo:[1,0,0] neg_hi:[1,0,0]')
        a(f'v_pk_fma_f32 v[{TI+o}:{TI+o+1}], v[{DR+o}:{DR+o+1}], v[{TS+o}:{TS+o+1}], v[{TI+o}:{TI+o+1}]')
    for p in range(8):
        a(f'v_cvt_pk_bf16_f32 v{PR+p}, v{TR+2*p}, v{TR+2*p+1}')
        a(f'v_cvt_pk_bf16_f32 v{PI+p}, v{TI+2*p}, v{TI+2*p+1}')

def layernorm2(a, F, T, sbase, outP, vkeep=None):
    for r in range(2):
        s = T[r]
        a(f'v_add_f32 v{s}, v{F[r]}, v{F[r]+1}'); a(f'v_add_f32 v{s+1}, v{F[r]+2}, v{F[r]+3}')
        for i in range(2, 8):
            a(f'v_add_f32 v{s+(i&1)}, v{s+(i&1)}, v{F[r]+2*i}'); a(f'v_add_f32 v{s+(i&1)}, v{s+(i&1)}, v{F[r]+2*i+1}')
        a(f'v_add_f32 v{s}, v{s}, v{s+1}')
    a('s_nop 1')
    rr(a, [reduce_chain(T[0]), reduce_chain(T[1])])
    a('s_nop 1')
    for r in range(2): a(f'v_readlane_b32 s{sbase+r}, v{T[r]}, 63')
    a('s_nop 1')
    for r in range(2):
        a(f'v_mov_b32 v{T[r]+3}, s{sbase+r}')
        a(f'v_mul_f32 v{T[r]+3}, {fconst(1/1024)}, v{T[r]+3}')
    for r in range(2):
        s = T[r]
        a(f'v_sub_f32 v{s+1}, v{F[r]}, v{s+3}'); a(f'v_mul_f32 v{s}, v{s+1}, v{s+1}')
        for i in range(1, 16):
            a(f'v_sub_f32 v{s+1+(i&1)}, v{F[r]+i}, v{s+3}'); a(f'v_fmac_f32 v{s}, v{s+1+(i&1)}, v{s+1+(i&1)}')
    a('s_nop 1')
    rr(a, [reduce_chain(T[0]), reduce_chain(T[1])])
    a('s_nop 1')
    for r in range(2): a(f'v_readlane_b32 s{sbase+2+r}, v{T[r]}, 63')
    a('s_nop 1')
    ch = []
    for r in range(2):
        s = T[r]
        ch.append([f'v_mov_b32 v{s}, s{sbase+2+r}',
                   f'v_mul_f32 v{s}, {fconst(1/1024)}, v{s}',
                   f'v_cvt_pk_bf16_f32 v{s}, v{s}, v{s+3}',
                   f'v_and_b32 v{s+3}, 0xffff0000, v{s}',
                   f'v_lshlrev_b32 v{s}, 16, v{s}',
                   f'v_add_f32 v{s}, {fconst(EPS)}, v{s}',
                   f'v_cvt_pk_bf16_f32 v{s}, v{s}, v{s}',
                   f'v_lshlrev_b32 v{s}, 16, v{s}',
                   f'v_sqrt_f32 v{s}, v{s}',
                   f'v_cvt_pk_bf16_f32 v{s}, v{s}, v{s}',
                   f'v_lshlrev_b32 v{s}, 16, v{s}',
                   f'v_rcp_f32 v{s}, v{s}'])
    rr(a, ch, gap=2)
    a('s_nop 0')
    for r in range(2):
        s = T[r]; P = outP[r]
        for i in range(8):
            a(f'v_sub_f32 v{F[r]+2*i}, v{F[r]+2*i}, v{s+3}'); a(f'v_sub_f32 v{F[r]+2*i+1}, v{F[r]+2*i+1}, v{s+3}')
            a(f'v_cvt_pk_bf16_f32 v{P+i}, v{F[r]+2*i}, v{F[r]+2*i+1}')
        for i in range(8):
            a(f'v_lshlrev_b32 v{F[r]+2*i}, 16, v{P+i}'); a(f'v_and_b32 v{F[r]+2*i+1}, 0xffff0000, v{P+i}')
            a(f'v_mul_f32 v{F[r]+2*i}, v{F[r]+2*i}, v{s}'); a(f'v_mul_f32 v{F[r]+2*i+1}, v{F[r]+2*i+1}, v{s}')
            a(f'v_cvt_pk_bf16_f32 v{P+i}, v{F[r]+2*i}, v{F[r]+2*i+1}')

def unpack16(a, F, P):
    for i in range(8):
        a(f'v_lshlrev_b32 v{F+2*i}, 16, v{P+i}')
        a(f'v_and_b32 v{F+2*i+1}, 0xffff0000, v{P+i}')

OFF_I = [8*(e >> 2) + (e & 3) for e in range(8)]
OFF_R = [8*(rho >> 2) + (rho & 3) for rho in range(16)]

def lane_floats(a, vL, vK, vH, t):
    a(f'v_and_b32 v{t}, 31, v{vL}'); a(f'v_cvt_f32_u32 v{vK}, v{t}')
    a(f'v_lshrrev_b32 v{t}, 5, v{vL}'); a(f'v_cvt_f32_u32 v{vH}, v{t}')

def p1(a):
    a.clear_prot()
    S_X, S_XD, sW = 8, 12, 16
    vL, t0, t1, t2, vK, vH, vB0, vSG = 1, 2, 3, 4, 6, 7, 8, 9
    CB = [10, 14]; NB = [18, 22]; A1 = [26, 30]; A2 = [34, 38]; TC, TS = 42, 58
    vNY = [74, 75]
    ROW = [80, 160]
    XN_LDS, S_LDS, SROW = 0, 16384, 2112
    a(f"s_load_dwordx2 s[4:5], s[0:1], {KA['x']}")
    a(f"s_load_dwordx2 s[6:7], s[0:1], {KA['ws']}")
    a(f'v_and_b32 v{vL}, 63, v0')
    a(f'v_lshrrev_b32 v{t0}, 6, v0')
    a('s_nop 0')
    a(f'v_readfirstlane_b32 s{sW}, v{t0}')
    a('s_lshr_b32 s17, s2, 6'); a('s_lshl_b32 s17, s17, 4')
    a('s_bfe_u32 s18, s2, 0x10005'); a('s_lshl_b32 s18, s18, 2'); a('s_add_u32 s17, s17, s18')
    a(f's_lshr_b32 s18, s{sW}, 1'); a('s_lshl_b32 s18, s18, 3'); a('s_add_u32 s17, s17, s18')
    a(f's_and_b32 s18, s{sW}, 1'); a('s_lshl_b32 s18, s18, 1'); a('s_add_u32 s17, s17, s18')
    a('s_lshl_b32 s17, s17, 5'); a('s_and_b32 s18, s2, 31'); a('s_add_u32 s17, s17, s18')
    a('s_lshl_b32 s20, s17, 11')
    a(f's_add_u32 s21, s20, {32*2048}')
    a(f'v_lshlrev_b32 v{t0}, 4, v{vL}')
    a('s_waitcnt lgkmcnt(0)')
    srd(a, S_X, 4, 2048*2048)
    srd_ws(a, S_XD, 6, WS_XD, 4*MB)
    for r in range(2):
        B = ROW[r]
        a(f'buffer_load_dwordx4 v[{B}:{B+3}], v{t0}, s[{S_X}:{S_X+3}], s{20+r} offen')
        a(f'buffer_load_dwordx4 v[{B+4}:{B+7}], v{t0}, s[{S_X}:{S_X+3}], s{20+r} offen offset:1024')
    lane_floats(a, vL, vK, vH, t1)
    a(f'v_mul_f32 v{t2}, {fconst(1/32)}, v{vK}')
    a(f'v_mul_f32 v{vB0}, {fconst(8.0)}, v{vH}'); a(f'v_mul_f32 v{vB0}, v{vB0}, v{t2}')
    lin_cos(a, [CB[0]+i for i in range(4)], list(range(8)), t2, vB0, 0.0, t0, t1)
    lin_cos(a, [NB[0]+i for i in range(4)], list(range(8)), t2, vB0, 0.25, t0, t1)
    sign_mask(a, vSG, vL, 0)
    for i in range(4):
        a(f'v_xor_b32 v{CB[1]+i}, v{vSG}, v{CB[0]+i}'); a(f'v_xor_b32 v{NB[1]+i}, v{vSG}, v{NB[0]+i}')
    a(f'v_bfe_u32 v{t0}, v{vL}, 1, 4'); a(f'v_cvt_f32_u32 v{t0}, v{t0}'); a(f'v_mul_f32 v{t2}, {fconst(1/32)}, v{t0}')
    a(f'v_and_b32 v{t0}, 1, v{vL}'); a(f'v_cvt_f32_u32 v{t0}, v{t0}'); a(f'v_mul_f32 v{t0}, {fconst(0.25)}, v{t0}')
    a(f'v_mul_f32 v{vB0}, 4.0, v{vH}'); a(f'v_fma_f32 v{vB0}, v{vB0}, v{t2}, v{t0}')
    lin_cos(a, [A1[0]+i for i in range(4)], OFF_I, t2, vB0, 0.0, t0, t1)
    lin_cos(a, [A2[0]+i for i in range(4)], OFF_I, t2, vB0, -0.25, t0, t1)
    sign_mask(a, vSG, vL, 1)
    for i in range(4):
        a(f'v_xor_b32 v{A1[1]+i}, v{vSG}, v{A1[0]+i}'); a(f'v_xor_b32 v{A2[1]+i}, v{vSG}, v{A2[0]+i}')
    a(f'v_mul_f32 v{t2}, {fconst(1/1024)}, v{vK}')
    a(f'v_mul_f32 v{vB0}, 4.0, v{vH}'); a(f'v_mul_f32 v{vB0}, v{vB0}, v{t2}')
    twiddle_tab(a, TC, TS, OFF_R, t2, vB0, t0, neg=True)
    a('s_waitcnt vmcnt(0)')
    F = [ROW[r] + 8 for r in range(2)]; T = [ROW[r] + 24 for r in range(2)]
    for r in range(2): unpack16(a, F[r], ROW[r])
    for r in range(2):
        v = vNY[r]
        a(f'v_sub_f32 v{v}, v{F[r]}, v{F[r]+1}')
        for i in range(1, 8):
            a(f'v_add_f32 v{v}, v{v}, v{F[r]+2*i}'); a(f'v_sub_f32 v{v}, v{v}, v{F[r]+2*i+1}')
    a('s_nop 1')
    rr(a, [reduce_chain(vNY[0]), reduce_chain(vNY[1])])
    a('s_nop 1')
    for r in range(2): a(f'v_readlane_b32 s{26+r}, v{vNY[r]}, 63')
    layernorm2(a, F, T, 28, ROW)
    for r in range(2):
        a(f'v_mul_f32 v{vNY[r]}, s{26+r}, v{T[r]}')
        a(f'v_cvt_pk_bf16_f32 v{vNY[r]}, 0, v{vNY[r]}')
    a(f's_lshl_b32 s22, s{sW}, 12')
    a(f'v_lshlrev_b32 v{t0}, 4, v{vL}'); a(f'v_add_u32 v{t0}, s22, v{t0}')
    for r in range(2):
        B = ROW[r]
        a(f'ds_write_b128 v{t0}, v[{B}:{B+3}] offset:{XN_LDS + r*2048}')
        a(f'ds_write_b128 v{t0}, v[{B+4}:{B+7}] offset:{XN_LDS + r*2048 + 1024}')
    a(f'v_lshrrev_b32 v{t1}, 5, v{vL}'); a(f'v_lshlrev_b32 v{t1}, 9, v{t1}')
    a(f'v_bfe_u32 v{t2}, v{vL}, 2, 2'); a(f'v_lshlrev_b32 v{t2}, 6, v{t2}'); a(f'v_add_u32 v{t1}, v{t1}, v{t2}')
    a(f'v_bfe_u32 v{t2}, v{vL}, 4, 1'); a(f'v_lshlrev_b32 v{t2}, 5, v{t2}'); a(f'v_add_u32 v{t1}, v{t1}, v{t2}')
    a(f'v_and_b32 v{t2}, 3, v{vL}'); a(f'v_lshlrev_b32 v{t2}, 3, v{t2}'); a(f'v_add_u32 v{t1}, v{t1}, v{t2}')
    a(f'v_add_u32 v{t1}, s22, v{t1}')
    a('s_waitcnt lgkmcnt(0)')
    for r in range(2):
        AOP = ROW[r] + 8
        for kk in range(2):
            for i in range(2):
                d = AOP + kk*4 + i*2
                a(f'ds_read_b64_tr_b16 v[{d}:{d+1}], v{t1} offset:{XN_LDS + r*2048 + kk*1024 + i*256}')
    a('s_waitcnt lgkmcnt(0)')
    for kk in range(2):
        for r in range(2):
            B = ROW[r]
            mf(a, B+16, B+8+4*kk, CB[kk], first=(kk == 0))
            mf(a, B+32, B+8+4*kk, NB[kk], first=(kk == 0))
    a('s_nop 7'); a('s_nop 7')
    for r in range(2):
        B = ROW[r]
        twiddle_apply(a, B+16, B+32, TC, TS, B+48, B+64, B, B+8)
    a('s_nop 1')
    for kk in range(2):
        for r in range(2):
            B = ROW[r]; mf(a, B+16, A1[kk], B+4*kk, first=(kk == 0))
        for r in range(2):
            B = ROW[r]; mf(a, B+16, A2[kk], B+8+4*kk)
    a(f'v_and_b32 v{t0}, 31, v{vL}'); a(f'v_lshlrev_b32 v{t0}, 3, v{t0}')
    a(f'v_lshrrev_b32 v{t1}, 5, v{vL}'); a(f'v_lshlrev_b32 v{t1}, 8, v{t1}'); a(f'v_add_u32 v{t0}, v{t0}, v{t1}')
    a(f's_mul_i32 s22, s{sW}, {2*SROW}'); a(f'v_add_u32 v{t0}, s22, v{t0}')
    a(f'v_cmp_eq_u32 vcc, 0, v{vL}')
    a('s_nop 7'); a('s_nop 7')
    for r in range(2):
        B = ROW[r]; D = B + 16; P = B + 32
        for q in range(4):
            a(f'v_cvt_pk_bf16_f32 v{P+2*q}, v{D+4*q}, v{D+4*q+1}')
            a(f'v_cvt_pk_bf16_f32 v{P+2*q+1}, v{D+4*q+2}, v{D+4*q+3}')
        a(f'v_cndmask_b32 v{P}, v{P}, v{vNY[r]}, vcc')
        for q in range(4):
            a(f'ds_write_b64 v{t0}, v[{P+2*q}:{P+2*q+1}] offset:{S_LDS + r*SROW + q*512}')
    a(f'v_bfe_u32 v{t1}, v{vL}, 2, 2'); a(f's_mov_b32 s22, {SROW}'); a(f'v_mul_lo_u32 v{t1}, v{t1}, s22')
    a(f'v_lshrrev_b32 v{t2}, 4, v{vL}'); a(f'v_lshlrev_b32 v{t2}, 5, v{t2}'); a(f'v_add_u32 v{t1}, v{t1}, v{t2}')
    a(f'v_and_b32 v{t2}, 3, v{vL}'); a(f'v_lshlrev_b32 v{t2}, 3, v{t2}'); a(f'v_add_u32 v{t1}, v{t1}, v{t2}')
    a(f's_lshl_b32 s22, s{sW}, 9'); a(f'v_add_u32 v{t1}, s22, v{t1}')
    a(f'v_lshrrev_b32 v{t2}, 2, v{vL}'); a(f'v_lshlrev_b32 v{t2}, 14, v{t2}')
    a('s_bfe_u32 s22, s2, 0x20002')
    a(f'v_and_b32 v{t0}, 3, v{vL}'); a(f'v_xor_b32 v{t0}, s22, v{t0}'); a(f'v_lshlrev_b32 v{t0}, 4, v{t0}')
    a(f'v_add_u32 v{t2}, v{t2}, v{t0}')
    a('s_lshl_b32 s22, s2, 6'); a(f's_lshl_b32 s23, s{sW}, 20'); a('s_add_u32 s22, s22, s23')
    a('s_waitcnt lgkmcnt(0)')
    a('s_barrier')
    O = 80
    for n in range(4):
        for i in range(2):
            d = O + n*4 + i*2
            a(f'ds_read_b64_tr_b16 v[{d}:{d+1}], v{t1} offset:{S_LDS + i*4*SROW + n*128}')
    for n in range(4):
        a(f's_waitcnt lgkmcnt({6 - 2*n})')
        a(f's_add_u32 s23, s22, {n*16*16384}')
        a(f'buffer_store_dwordx4 v[{O+n*4}:{O+n*4+3}], v{t2}, s[{S_XD}:{S_XD+3}], s23 offen')
    a('s_endpgm')

def wprep(a, base):
    a.clear_prot()
    S_R, S_I, S_WT, sW, sU = 8, 12, 16, 20, 21
    vL = 1
    RSZ = 33*1024
    a(f"s_load_dwordx4 s[4:7], s[0:1], {KA['wr']}")
    a(f"s_load_dwordx2 s[22:23], s[0:1], {KA['ws']}")
    a(f'v_and_b32 v{vL}, 63, v0'); a('v_lshrrev_b32 v2, 6, v0'); a('s_nop 0')
    a(f'v_readfirstlane_b32 s{sW}, v2')
    a(f's_sub_u32 s{sU}, s2, {base}')
    a(f'v_lshlrev_b32 v2, 4, v{vL}')
    a('s_waitcnt lgkmcnt(0)')
    srd(a, S_R, 4, 2048*1026); srd(a, S_I, 6, 2048*1026)
    srd_ws(a, S_WT, 22, WS_WT, 4*MB)
    a(f's_mul_i32 s24, s{sU}, {32*1026}')
    for arr, S in ((0, S_R), (1, S_I)):
        for n in range(9):
            lbl = f'L_wp_skip{arr}_{n}'
            if n == 8:
                a(f's_cmp_lg_u32 s{sW}, 0'); a(f's_cbranch_scc1 {lbl}')
            a(f's_lshl_b32 s25, s{sW}, 10'); a(f's_add_u32 s25, s25, {n*4096}')
            a(f's_add_u32 m0, s25, {arr*RSZ}')
            a('s_add_u32 s25, s25, s24')
            a(f'buffer_load_dwordx4 v2, s[{S}:{S+3}], s25 offen lds')
            if n == 8: a(f'{lbl}:')
    a(f'v_and_b32 v3, 31, v{vL}'); a('s_movk_i32 s25, 1026'); a('v_mul_lo_u32 v3, v3, s25')
    a(f'v_lshrrev_b32 v4, 5, v{vL}'); a('v_lshlrev_b32 v5, 6, v4'); a('v_add_u32 v3, v3, v5')
    a(f'v_lshlrev_b32 v6, 13, v4'); a(f'v_and_b32 v5, 31, v{vL}'); a('v_lshlrev_b32 v5, 2, v5'); a('v_add_u32 v6, v6, v5')
    a(f's_and_b32 s25, s{sU}, 1'); a('s_lshl_b32 s25, s25, 12')
    a(f's_lshr_b32 s26, s{sU}, 4'); a('s_lshl_b32 s26, s26, 10'); a('s_add_u32 s25, s25, s26')
    a(f's_bfe_u32 s26, s{sU}, 0x20001'); a('s_lshl_b32 s26, s26, 8'); a('s_add_u32 s25, s25, s26')
    a(f's_bfe_u32 s26, s{sU}, 0x10003'); a('s_lshl_b32 s26, s26, 7'); a('s_add_u32 s25, s25, s26')
    a(f's_lshl_b32 s26, s{sW}, 20'); a('s_add_u32 s25, s25, s26')
    a(f's_lshl_b32 s26, s{sW}, 8'); a('v_add_u32 v3, s26, v3')
    a('v_mov_b32 v7, v3')
    a(f'v_cmp_gt_u32 vcc, 32, v{vL}')
    a(f's_cmp_eq_u32 s{sW}, 0'); a('s_cselect_b64 s[26:27], vcc, 0')
    a('v_add_u32 v8, 1024, v3')
    a('v_cndmask_b32 v7, v3, v8, s[26:27]')
    a('s_waitcnt vmcnt(0)')
    a('s_barrier')
    for i0 in range(0, 64, 8):
        for i in range(i0, i0+8):
            off = (i & 31)*2 + (i >> 5)*128
            src = 7 if i == 0 else 3
            a(f'ds_read_u16 v{10+(i&7)}, v{src} offset:{off}')
            a(f'ds_read_u16_d16_hi v{20+(i&7)}, v{src} offset:{off + RSZ}')
        for i in range(i0, i0+8):
            a(f's_waitcnt lgkmcnt({min(15, 14 - 2*(i-i0))})')
            a(f'v_or_b32 v{30+(i&7)}, v{10+(i&7)}, v{20+(i&7)}')
            a(f's_add_u32 s26, s25, {i*16384}')
            a(f'buffer_store_dword v{30+(i&7)}, v6, s[{S_WT}:{S_WT+3}], s26 offen')
        a('s_nop 0')
    a('s_endpgm')


def p2(a):
    a.clear_prot()
    S_XD, S_WT, S_YD, sW = 8, 12, 16, 20
    vL, t0, t1, t2, vK, vH, vB0, vSG = 1, 2, 3, 4, 5, 6, 7, 8
    C64 = [10+4*n for n in range(4)]; S64 = [26+4*n for n in range(4)]; N64 = [42+4*n for n in range(4)]
    C32 = [58, 62]; S32 = [66, 70]; N32 = [74, 78]
    TCf, TSf, TCi, TSi = 82, 98, 114, 130
    WV = 146
    AR = [162+4*n for n in range(4)]; AI = [178+4*n for n in range(4)]
    DR, DI = 194, 210
    TR, TI = 162, 178
    PR, PI = 226, 234
    QR, QI = 242, 162
    XL, EX = 0, 16384
    a(f"s_load_dwordx2 s[6:7], s[0:1], {KA['ws']}")
    a(f'v_and_b32 v{vL}, 63, v0'); a(f'v_lshrrev_b32 v{t0}, 6, v0'); a('s_nop 0')
    a(f'v_readfirstlane_b32 s{sW}, v{t0}')
    a(f'v_lshlrev_b32 v{t0}, 4, v{vL}')
    a(f'v_lshlrev_b32 v{t1}, 2, v{vL}')
    a(f's_and_b32 s21, s{sW}, 1')
    a(f's_lshr_b32 s22, s{sW}, 1')
    a('s_waitcnt lgkmcnt(0)')
    srd_ws(a, S_XD, 6, WS_XD, 4*MB); srd_ws(a, S_WT, 6, WS_WT, 4*MB); srd_ws(a, S_YD, 6, WS_YD, 4*MB)
    a(f's_lshl_b32 s23, s{sW}, 12'); a('s_mov_b32 m0, s23')
    a('s_lshl_b32 s24, s2, 14'); a('s_add_u32 s24, s24, s23')
    for n in range(4):
        a(f'buffer_load_dwordx4 v{t0}, s[{S_XD}:{S_XD+3}], s24 offen offset:{n*1024} lds')
    for rho in range(16):
        a(f'buffer_load_dword v{WV+rho}, v{t1}, s[{S_WT}:{S_WT+3}], s24 offen offset:{rho*256}')
    lane_floats(a, vL, vK, vH, t2)
    a('s_lshl_b32 s25, s21, 5'); a(f'v_cvt_f32_u32 v{t2}, s25')
    a(f'v_add_f32 v{vB0}, v{vK}, v{t2}')
    vX = 9
    a(f'v_mov_b32 v{vX}, v{vB0}')
    a(f'v_mul_f32 v{t2}, {fconst(1/64)}, v{vX}')
    a(f'v_mul_f32 v{vB0}, 4.0, v{vH}')
    a(f's_lshl_b32 s25, s21, 5'); a(f'v_cvt_f32_u32 v{t0}, s25'); a(f'v_add_f32 v{vB0}, v{vB0}, v{t0}')
    a(f'v_mul_f32 v{vB0}, v{vB0}, v{t2}')
    for n in range(2):
        offs = [16*n + o for o in OFF_I]
        lin_cos(a, [C64[n]+i for i in range(4)], offs, t2, vB0, 0.0, t0, t1)
        lin_cos(a, [S64[n]+i for i in range(4)], offs, t2, vB0, -0.25, t0, t1)
    sign_mask(a, vSG, vL, 0)
    for n in range(2):
        for i in range(4):
            a(f'v_xor_b32 v{C64[n+2]+i}, v{vSG}, v{C64[n]+i}'); a(f'v_xor_b32 v{S64[n+2]+i}, v{vSG}, v{S64[n]+i}')
    for n in range(4):
        for i in range(4): a(f'v_xor_b32 v{N64[n]+i}, 0x80008000, v{S64[n]+i}')
    a(f'v_mul_f32 v{t2}, {fconst(1/32)}, v{vK}')
    a(f'v_mul_f32 v{vB0}, 4.0, v{vH}'); a(f'v_mul_f32 v{vB0}, v{vB0}, v{t2}')
    lin_cos(a, [C32[0]+i for i in range(4)], OFF_I, t2, vB0, 0.0, t0, t1)
    lin_cos(a, [S32[0]+i for i in range(4)], OFF_I, t2, vB0, -0.25, t0, t1)
    for i in range(4):
        a(f'v_xor_b32 v{C32[1]+i}, v{vSG}, v{C32[0]+i}'); a(f'v_xor_b32 v{S32[1]+i}, v{vSG}, v{S32[0]+i}')
    for n in range(2):
        for i in range(4): a(f'v_xor_b32 v{N32[n]+i}, 0x80008000, v{S32[n]+i}')
    a(f'v_mul_f32 v{t2}, {fconst(1/2048)}, v{vX}')
    a(f'v_mul_f32 v{vB0}, 4.0, v{vH}'); a(f'v_mul_f32 v{vB0}, v{vB0}, v{t2}')
    twiddle_tab(a, TCf, TSf, OFF_R, t2, vB0, t0, neg=True, scale=2.0**-20)
    a(f'v_mul_f32 v{t2}, {fconst(1/2048)}, v{vK}')
    a(f'v_mul_f32 v{vB0}, 4.0, v{vH}')
    a(f's_lshl_b32 s25, s21, 5'); a(f'v_cvt_f32_u32 v{t0}, s25'); a(f'v_add_f32 v{vB0}, v{vB0}, v{t0}')
    a(f'v_mul_f32 v{vB0}, v{vB0}, v{t2}')
    twiddle_tab(a, TCi, TSi, OFF_R, t2, vB0, t0, neg=False)
    vA = [[2, 3], [4, 5]]
    a(f'v_bfe_u32 v{vB0}, v{vL}, 2, 2')
    a('s_lshl_b32 s25, s22, 1')
    a(f'v_xor_b32 v{vB0}, s25, v{vB0}')
    a(f'v_lshlrev_b32 v{vSG}, 6, v{vL}')
    for ri in range(2):
        a(f'v_xor_b32 v{vX}, {ri}, v{vB0}'); a(f'v_lshlrev_b32 v{vX}, 4, v{vX}'); a(f'v_add_u32 v{vX}, v{vX}, v{vSG}')
        a('s_lshl_b32 s25, s21, 13'); a(f'v_add_u32 v{vA[ri][0]}, s25, v{vX}')
        a('s_xor_b32 s25, s25, 8192'); a(f'v_add_u32 v{vA[ri][1]}, s25, v{vX}')
    a('s_waitcnt vmcnt(16)')
    a('s_barrier')
    for n in range(4):
        a(f'ds_read_b128 v[{AR[n]}:{AR[n]+3}], v{vA[0][n>>1]} offset:{XL + (n&1)*4096}')
        a(f'ds_read_b128 v[{AI[n]}:{AI[n]+3}], v{vA[1][n>>1]} offset:{XL + (n&1)*4096}')
    for n in range(4):
        a(f's_waitcnt lgkmcnt({6 - 2*n})')
        mf(a, DR, AR[n], C64[n], first=(n == 0)); mf(a, DI, AI[n], C64[n], first=(n == 0))
        mf(a, DR, AI[n], S64[n]); mf(a, DI, AR[n], N64[n])
    a('s_nop 7'); a('s_nop 7')
    twiddle_apply(a, DR, DI, TCf, TSf, TR, TI, PR, PI)
    a('s_nop 1')
    for kk in range(2):
        mf(a, DR, C32[kk], PR+4*kk, first=(kk == 0)); mf(a, DI, C32[kk], PI+4*kk, first=(kk == 0))
        mf(a, DR, S32[kk], PI+4*kk); mf(a, DI, N32[kk], PR+4*kk)
    a('s_waitcnt vmcnt(0)')
    for rho in range(16):
        a(f'v_lshlrev_b32 v{TR+rho}, 16, v{WV+rho}'); a(f'v_and_b32 v{TI+rho}, 0xffff0000, v{WV+rho}')
    twiddle_apply(a, DR, DI, TR, TI, TCf, TSf, PR, PI)
    a('s_nop 1')
    for kk in range(2):
        mf(a, DR, PR+4*kk, C32[kk], first=(kk == 0)); mf(a, DI, PI+4*kk, C32[kk], first=(kk == 0))
        mf(a, DR, PI+4*kk, N32[kk]); mf(a, DI, PR+4*kk, S32[kk])
    a(f'v_lshlrev_b32 v{t0}, 4, v{vL}')
    a(f's_lshl_b32 s25, s{sW}, 12'); a(f'v_add_u32 v{t1}, s25, v{t0}')
    a('s_xor_b32 s25, s25, 4096'); a(f'v_add_u32 v{t2}, s25, v{t0}')
    a('s_nop 7'); a('s_nop 5')
    twiddle_apply(a, DR, DI, TCi, TSi, TR, TI, PR, PI)
    for n in range(2):
        a(f'ds_write_b128 v{t1}, v[{PR+4*n}:{PR+4*n+3}] offset:{EX + n*1024}')
        a(f'ds_write_b128 v{t1}, v[{PI+4*n}:{PI+4*n+3}] offset:{EX + 2048 + n*1024}')
    a('s_waitcnt lgkmcnt(0)')
    a('s_barrier')
    for n in range(2):
        a(f'ds_read_b128 v[{QR+4*n}:{QR+4*n+3}], v{t2} offset:{EX + n*1024}')
        a(f'ds_read_b128 v[{QI+4*n}:{QI+4*n+3}], v{t2} offset:{EX + 2048 + n*1024}')
    for n in range(2):
        mf(a, DR, C64[n], PR+4*n, first=(n == 0)); mf(a, DI, S64[n], PR+4*n, first=(n == 0))
        mf(a, DR, N64[n], PI+4*n); mf(a, DI, C64[n], PI+4*n)
    a('s_waitcnt lgkmcnt(0)')
    for n in range(2):
        mf(a, DR, C64[2+n], QR+4*n); mf(a, DI, S64[2+n], QR+4*n)
        mf(a, DR, N64[2+n], QI+4*n); mf(a, DI, C64[2+n], QI+4*n)
    a('s_bfe_u32 s25, s2, 0x30002')
    a(f'v_and_b32 v{t0}, 31, v{vL}'); a(f'v_xor_b32 v{t0}, s25, v{t0}'); a(f'v_lshlrev_b32 v{t0}, 3, v{t0}')
    a(f'v_lshrrev_b32 v{t1}, 5, v{vL}'); a(f'v_lshlrev_b32 v{t1}, 10, v{t1}'); a(f'v_add_u32 v{t0}, v{t0}, v{t1}')
    a('s_lshl_b32 s25, s21, 13'); a('s_lshl_b32 s26, s22, 2'); a('s_add_u32 s25, s25, s26')
    a(f'v_add_u32 v{t0}, s25, v{t0}')
    a(f'v_lshlrev_b32 v{t1}, 4, v{vL}'); a(f's_lshl_b32 s25, s{sW}, 12'); a(f'v_add_u32 v{t1}, s25, v{t1}')
    a(f'v_lshrrev_b32 v{t2}, 2, v{vL}'); a(f'v_lshlrev_b32 v{t2}, 14, v{t2}')
    a(f'v_and_b32 v{vB0}, 3, v{vL}'); a(f'v_lshlrev_b32 v{vB0}, 4, v{vB0}'); a(f'v_add_u32 v{t2}, v{t2}, v{vB0}')
    a('s_lshl_b32 s25, s2, 6'); a(f's_lshl_b32 s26, s{sW}, 20'); a('s_add_u32 s25, s25, s26')
    a('s_nop 7'); a('s_nop 3')
    for rho in range(16):
        a(f'v_cvt_pk_bf16_f32 v{TR+rho}, v{DR+rho}, v{DI+rho}')
    for rho in range(16):
        a(f'ds_write_b32 v{t0}, v{TR+rho} offset:{XL + OFF_R[rho]*256}')
    a('s_waitcnt lgkmcnt(0)')
    a('s_barrier')
    for n in range(4):
        a(f'ds_read_b128 v[{DR+4*n}:{DR+4*n+3}], v{t1} offset:{XL + n*1024}')
    for n in range(4):
        a(f's_waitcnt lgkmcnt({3-n})')
        a(f's_add_u32 s26, s25, {n*16*16384}')
        a(f'buffer_store_dwordx4 v[{DR+4*n}:{DR+4*n+3}], v{t2}, s[{S_YD}:{S_YD+3}], s26 offen')
    a('s_endpgm')

def p3(a):
    a.clear_prot()
    S_X, S_YD, S_H, S_HN, sW = 8, 12, 16, 20, 24
    vL, t0, t1, t2, vK, vH, vB0, vSG, vBf, vNS = 1, 2, 3, 4, 5, 6, 7, 8, 9, 74
    B1 = [10, 14]; B2 = [18, 22]; CB = [26, 30]; NB = [34, 38]; TC, TS = 42, 58
    vXA = 75
    ROW = [80, 160]
    a(f"s_load_dwordx2 s[4:5], s[0:1], {KA['x']}")
    a(f"s_load_dwordx2 s[6:7], s[0:1], {KA['ws']}")
    a(f'v_and_b32 v{vL}, 63, v0'); a(f'v_lshrrev_b32 v{t0}, 6, v0'); a('s_nop 0')
    a(f'v_readfirstlane_b32 s{sW}, v{t0}')
    a(f'v_lshlrev_b32 v{t0}, 4, v{vL}')
    a(f'v_and_b32 v{vXA}, 31, v{vL}'); a(f'v_lshlrev_b32 v{vXA}, 6, v{vXA}')
    a(f'v_lshrrev_b32 v{t1}, 5, v{vL}'); a(f'v_lshlrev_b32 v{t1}, 5, v{t1}'); a(f'v_add_u32 v{vXA}, v{vXA}, v{t1}')
    a(f's_lshl_b32 s25, s2, 3'); a(f's_lshl_b32 s26, s{sW}, 1'); a('s_add_u32 s25, s25, s26'); a('s_lshl_b32 s28, s25, 11')
    a('s_add_u32 s29, s28, 2048')
    a('s_waitcnt lgkmcnt(0)')
    srd(a, S_X, 4, 2048*2048)
    srd_ws(a, S_YD, 6, WS_YD, 4*MB); srd_ws(a, S_H, 6, WS_H, 4*MB); srd_ws(a, S_HN, 6, WS_HN, 4*MB)
    a(f's_lshl_b32 s26, s{sW}, 12'); a('s_mov_b32 m0, s26')
    a('s_lshl_b32 s27, s2, 14'); a('s_add_u32 s27, s27, s26')
    for n in range(4):
        a(f'buffer_load_dwordx4 v{t0}, s[{S_YD}:{S_YD+3}], s27 offen offset:{n*1024} lds')
    for r in range(2):
        B = ROW[r]
        a(f'buffer_load_dwordx4 v[{B}:{B+3}], v{vXA}, s[{S_X}:{S_X+3}], s{28+r} offen')
        a(f'buffer_load_dwordx4 v[{B+4}:{B+7}], v{vXA}, s[{S_X}:{S_X+3}], s{28+r} offen offset:16')
    lane_floats(a, vL, vK, vH, t2)
    a(f'v_bfe_u32 v{t0}, v{vL}, 2, 1'); a(f'v_lshlrev_b32 v{t0}, 4, v{t0}')
    a(f'v_bfe_u32 v{t1}, v{vL}, 3, 2'); a(f'v_lshlrev_b32 v{t1}, 2, v{t1}'); a(f'v_add_u32 v{t0}, v{t0}, v{t1}')
    a(f'v_and_b32 v{t1}, 3, v{vL}'); a(f'v_add_u32 v{t0}, v{t0}, v{t1}'); a(f'v_cvt_f32_u32 v{vBf}, v{t0}')
    a(f'v_mul_f32 v{t2}, {fconst(1/32)}, v{vBf}')
    a(f'v_mul_f32 v{vB0}, 4.0, v{vH}'); a(f'v_mul_f32 v{vB0}, v{vB0}, v{t2}')
    for kk in range(2):
        for dst, add in ((B1, 0.0), (B2, -0.25)):
            for i in range(4):
                k2 = 8*kk + i
                a(f'v_mov_b32 v{t0}, {fconst(float(k2))}'); a(f'v_fma_f32 v{t0}, v{t0}, v{t2}, v{vB0}')
                if add: a(f'v_add_f32 v{t0}, {fconst(add)}, v{t0}')
                a(f'v_add_f32 v{t1}, {fconst(0.25)}, v{t0}')
                a(f'v_cos_f32 v{t0}, v{t0}'); a(f'v_cos_f32 v{t1}, v{t1}'); a('s_nop 0')
                a(f'v_cvt_pk_bf16_f32 v{dst[kk]+i}, v{t0}, v{t1}')
    a(f'v_mul_f32 v{t2}, {fconst(1/32)}, v{vK}')
    a(f'v_mul_f32 v{vB0}, 4.0, v{vH}'); a(f'v_mul_f32 v{vB0}, v{vB0}, v{t2}')
    lin_cos(a, [CB[0]+i for i in range(4)], OFF_I, t2, vB0, 0.0, t0, t1)
    lin_cos(a, [NB[0]+i for i in range(4)], OFF_I, t2, vB0, 0.25, t0, t1)
    sign_mask(a, vSG, vL, 0)
    for i in range(4):
        a(f'v_xor_b32 v{CB[1]+i}, v{vSG}, v{CB[0]+i}'); a(f'v_xor_b32 v{NB[1]+i}, v{vSG}, v{NB[0]+i}')
    a(f'v_mul_f32 v{t2}, {fconst(1/1024)}, v{vBf}')
    a(f'v_mul_f32 v{vB0}, 4.0, v{vH}'); a(f'v_mul_f32 v{vB0}, v{vB0}, v{t2}')
    twiddle_tab(a, TC, TS, OFF_R, t2, vB0, t0, neg=False)
    a(f'v_and_b32 v{t0}, 1, v{vL}'); a(f'v_cvt_f32_u32 v{t0}, v{t0}'); a(f'v_sub_f32 v{t0}, 0.5, v{t0}')
    a(f'v_cmp_gt_u32 vcc, 32, v{vL}'); a('s_nop 1'); a(f'v_cndmask_b32 v{vNS}, 0, v{t0}, vcc')
    a(f'v_bfe_u32 v{t0}, v{vL}, 2, 3')
    a(f's_lshl_b32 s26, s{sW}, 1')
    a(f'v_and_b32 v{t1}, 31, v{vL}'); a(f'v_lshlrev_b32 v{t1}, 6, v{t1}')
    a(f'v_lshrrev_b32 v{t2}, 5, v{vL}'); a(f'v_lshlrev_b32 v{t2}, 12, v{t2}'); a(f'v_add_u32 v{t1}, v{t1}, v{t2}')
    vAd = [2, 3]
    a(f'v_xor_b32 v{vB0}, s26, v{t0}')
    a(f'v_xor_b32 v{vSG}, 1, v{vB0}')
    a(f'v_lshlrev_b32 v{vB0}, 3, v{vB0}'); a(f'v_lshlrev_b32 v{vSG}, 3, v{vSG}')
    a(f'v_add_u32 v{vAd[0]}, v{t1}, v{vB0}'); a(f'v_add_u32 v{vAd[1]}, v{t1}, v{vSG}')
    a('s_waitcnt vmcnt(4)')
    a('s_barrier')
    for r in range(2):
        AOP = ROW[r] + 8
        for kk in range(2):
            for jj in range(2):
                d = AOP + 4*kk + 2*jj
                a(f'ds_read_b64 v[{d}:{d+1}], v{vAd[r]} offset:{kk*8192 + jj*2048}')
    a('s_waitcnt lgkmcnt(0)')
    for r in range(2):
        AOP = ROW[r] + 8
        a(f'v_readlane_b32 s{30+r}, v{AOP}, 0')
    a('s_nop 0')
    for r in range(2):
        AOP = ROW[r] + 8
        a(f's_and_b32 s{30+r}, s{30+r}, 0xffff0000')
        a(f'v_writelane_b32 v{AOP}, 0, 0')
    a('s_nop 1')
    for kk in range(2):
        for r in range(2):
            B = ROW[r]
            mf(a, B+16, B+8+4*kk, B1[kk], first=(kk == 0)); mf(a, B+32, B+8+4*kk, B2[kk], first=(kk == 0))
    a('s_nop 7'); a('s_nop 7')
    for r in range(2):
        B = ROW[r]
        a(f'v_fmac_f32 v{B+16}, s{30+r}, v{vNS}')
    for r in range(2):
        B = ROW[r]
        twiddle_apply(a, B+16, B+32, TC, TS, B+48, B+64, B+8, B+32+8)
    a('s_nop 1')
    for kk in range(2):
        for r in range(2):
            B = ROW[r]; mf(a, B+16, B+8+4*kk, CB[kk], first=(kk == 0))
        for r in range(2):
            B = ROW[r]; mf(a, B+16, B+40+4*kk, NB[kk])
    a('s_waitcnt vmcnt(0)')
    for r in range(2): unpack16(a, ROW[r]+48, ROW[r])
    a('s_nop 7'); a('s_nop 3')
    for r in range(2):
        B = ROW[r]; D = B + 16; X = B + 48; P = B + 32
        for i in range(8):
            a(f'v_cvt_pk_bf16_f32 v{P+i}, v{D+2*i}, v{D+2*i+1}')
        unpack16(a, D, P)
        for i in range(16): a(f'v_add_f32 v{D+i}, v{D+i}, v{X+i}')
        for i in range(8):
            a(f'v_cvt_pk_bf16_f32 v{B+i}, v{D+2*i}, v{D+2*i+1}')
        a(f'buffer_store_dwordx4 v[{B}:{B+3}], v{vXA}, s[{S_H}:{S_H+3}], s{28+r} offen')
        a(f'buffer_store_dwordx4 v[{B+4}:{B+7}], v{vXA}, s[{S_H}:{S_H+3}], s{28+r} offen offset:16')
        unpack16(a, D, B)
    F = [ROW[r] + 16 for r in range(2)]; T = [ROW[r] + 48 for r in range(2)]; OP = [ROW[r] + 64 for r in range(2)]
    layernorm2(a, F, T, 32, OP)
    for r in range(2):
        a(f'buffer_store_dwordx4 v[{OP[r]}:{OP[r]+3}], v{vXA}, s[{S_HN}:{S_HN+3}], s{28+r} offen')
        a(f'buffer_store_dwordx4 v[{OP[r]+4}:{OP[r]+7}], v{vXA}, s[{S_HN}:{S_HN+3}], s{28+r} offen offset:16')
    a('s_endpgm')


def pack_win(a, base):
    a.clear_prot()
    S_W, S_O, sW, sU = 8, 12, 20, 21
    vL = 1
    a(f"s_load_dwordx2 s[4:5], s[0:1], {KA['win']}")
    a(f"s_load_dwordx2 s[6:7], s[0:1], {KA['ws']}")
    a(f'v_and_b32 v{vL}, 63, v0'); a('v_lshrrev_b32 v2, 6, v0'); a('s_nop 0')
    a(f'v_readfirstlane_b32 s{sW}, v2')
    a(f's_sub_u32 s{sU}, s2, {base}')
    a(f's_mul_i32 s22, s{sW}, 448'); a(f'v_add_u32 v2, s22, v{vL}')
    a('s_movk_i32 s23, 9363'); a('s_movk_i32 s24, 7168')
    for m in range(7):
        a(f'v_add_u32 v3, {64*m}, v2')
        a('v_mul_lo_u32 v4, v3, s23'); a('v_lshrrev_b32 v4, 19, v4')
        a('v_mul_u32_u24 v5, 56, v4'); a('v_sub_u32 v5, v3, v5')
        a('v_mul_lo_u32 v4, v4, s24'); a('v_lshlrev_b32 v5, 4, v5'); a(f'v_add_u32 v{10+m}, v4, v5')
    a(f's_lshr_b32 s22, s{sU}, 3'); a(f's_mul_i32 s22, s22, {32*7168}')
    a(f's_and_b32 s23, s{sU}, 7'); a('s_mul_i32 s23, s23, 896'); a('s_add_u32 s22, s22, s23')
    a(f's_mul_i32 s23, s{sW}, {7*1024}')
    a('s_waitcnt lgkmcnt(0)')
    srd(a, S_W, 4, SZ_WINP); srd_ws(a, S_O, 6, WS_WINP, SZ_WINP)
    for m in range(7):
        a(f's_add_u32 m0, s23, {m*1024}'); a('s_nop 0')
        a(f'buffer_load_dwordx4 v{10+m}, s[{S_W}:{S_W+3}], s22 offen lds')
    a(f'v_lshrrev_b32 v2, 4, v{vL}'); a('v_lshlrev_b32 v2, 3, v2'); a(f'v_bfe_u32 v3, v{vL}, 2, 2'); a('v_add_u32 v2, v2, v3')
    a('s_movk_i32 s24, 896'); a('v_mul_lo_u32 v2, v2, s24')
    a(f'v_and_b32 v3, 3, v{vL}'); a('v_lshlrev_b32 v3, 3, v3'); a('v_add_u32 v2, v2, v3')
    a(f's_mul_i32 s24, s{sW}, 224'); a('v_add_u32 v2, s24, v2')
    a(f's_and_b32 s23, s{sU}, 7'); a('s_lshl_b32 s23, s23, 2'); a(f's_add_u32 s23, s23, s{sW}'); a('s_lshl_b32 s23, s23, 5')
    a(f's_lshr_b32 s24, s{sU}, 3'); a('s_add_u32 s23, s23, s24'); a('s_mul_i32 s23, s23, 7168')
    a(f'v_lshlrev_b32 v3, 4, v{vL}')
    a('s_waitcnt vmcnt(0)')
    a('s_barrier')
    for u in range(7):
        for i in range(2):
            d = 20 + u*4 + i*2
            a(f'ds_read_b64_tr_b16 v[{d}:{d+1}], v2 offset:{i*4*896 + u*32}')
    for u in range(7):
        a(f's_waitcnt lgkmcnt({12 - 2*u})')
        a(f's_add_u32 s24, s23, {u*1024}')
        a(f'buffer_store_dwordx4 v[{20+u*4}:{23+u*4}], v3, s[{S_O}:{S_O+3}], s24 offen')
    a('s_endpgm')

def pack_wout_touch(a, base):
    a.clear_prot()
    S_W, S_O, S_P, S_S, sW, sU = 8, 12, 16, 32, 20, 21
    vL = 1
    a(f"s_load_dwordx2 s[4:5], s[0:1], {KA['wout']}")
    a(f"s_load_dwordx2 s[6:7], s[0:1], {KA['ws']}")
    a(f"s_load_dwordx2 s[28:29], s[0:1], {KA['wsp']}")
    a(f'v_and_b32 v{vL}, 63, v0'); a('v_lshrrev_b32 v2, 6, v0'); a('s_nop 0')
    a(f'v_readfirstlane_b32 s{sW}, v2')
    a(f's_sub_u32 s{sU}, s2, {base}')
    a(f'v_lshlrev_b32 v6, 4, v{vL}')
    a('s_waitcnt lgkmcnt(0)')
    srd(a, S_W, 4, SZ_WOUTP); srd_ws(a, S_O, 6, WS_WOUTP, SZ_WOUTP)
    srd(a, S_P, 28, 2048*4096); srd_ws(a, S_S, 6, WS_ST, 16*16*128*8)
    a(f's_cmp_ge_u32 s{sU}, 224'); a('s_cbranch_scc1 L_pw_touch')
    a(f'v_lshrrev_b32 v2, 5, v{vL}'); a('v_lshlrev_b32 v2, 11, v2'); a(f'v_and_b32 v3, 31, v{vL}'); a('v_lshlrev_b32 v3, 4, v3'); a('v_add_u32 v2, v2, v3')
    a(f's_lshr_b32 s22, s{sU}, 2'); a('s_lshl_b32 s22, s22, 16')
    a(f's_and_b32 s23, s{sU}, 3'); a('s_lshl_b32 s23, s23, 9'); a('s_add_u32 s22, s22, s23')
    a(f's_lshl_b32 s23, s{sW}, 14'); a('s_add_u32 s22, s22, s23')
    a(f's_lshl_b32 s23, s{sW}, 12')
    for m in range(4):
        a(f's_add_u32 m0, s23, {m*1024}'); a(f's_add_u32 s30, s22, {m*4096}')
        a(f'buffer_load_dwordx4 v2, s[{S_W}:{S_W+3}], s30 offen lds')
    a(f'v_lshrrev_b32 v2, 4, v{vL}'); a('v_lshlrev_b32 v2, 2, v2'); a(f'v_bfe_u32 v3, v{vL}, 2, 2'); a('v_add_u32 v2, v2, v3')
    a('v_lshlrev_b32 v2, 9, v2')
    a(f'v_and_b32 v3, 3, v{vL}'); a('v_lshlrev_b32 v3, 4, v3'); a('v_add_u32 v2, v2, v3')
    a(f's_lshl_b32 s24, s{sW}, 7'); a('v_add_u32 v2, s24, v2')
    a(f's_and_b32 s23, s{sU}, 3'); a('s_lshl_b32 s23, s23, 2'); a(f's_add_u32 s23, s23, s{sW}'); a('s_mul_i32 s23, s23, 56')
    a(f's_lshr_b32 s24, s{sU}, 2'); a('s_add_u32 s23, s23, s24'); a('s_lshl_b32 s23, s23, 12')
    a('s_waitcnt vmcnt(0)')
    a('s_barrier')
    for u in range(4):
        for i in range(2):
            d = 20 + u*4 + i*2
            a(f'ds_read_b64_tr_b16 v[{d}:{d+1}], v2 offset:{i*8192 + (u >> 1)*64 + (u & 1)*8}')
    for u in range(4):
        a(f's_waitcnt lgkmcnt({6 - 2*u})')
        a(f's_add_u32 s24, s23, {u*1024}')
        a(f'buffer_store_dwordx4 v[{20+u*4}:{23+u*4}], v6, s[{S_O}:{S_O+3}], s24 offen')
    a('L_pw_touch:')
    a(f'v_mov_b32 v40, 0xbf800000'); a('v_mov_b32 v41, v40'); a('v_mov_b32 v42, v40'); a('v_mov_b32 v43, v40')
    a(f's_lshl_b32 s22, s{sU}, 10')
    a(f's_cmp_lg_u32 s{sW}, 0'); a('s_cbranch_scc1 L_pw_nost')
    a(f'buffer_store_dwordx4 v[40:43], v6, s[{S_S}:{S_S+3}], s22 offen')
    a('L_pw_nost:')
    a(f's_lshl_b32 s22, s{sU}, 15'); a(f's_lshl_b32 s23, s{sW}, 13'); a('s_add_u32 s22, s22, s23')
    for n in range(8):
        a(f's_add_u32 s23, s22, {n*1024}')
        a(f'buffer_load_dwordx4 v[{44+4*n}:{47+4*n}], v6, s[{S_P}:{S_P+3}], s23 offen')
    a('s_waitcnt vmcnt(0)')
    a('s_endpgm')

def gen_k2(side=True):
    a = Asm()
    a('s_cmp_lt_u32 s2, 256'); a('s_cbranch_scc1 L_k2_p2')
    if side:
        a('s_cmp_lt_u32 s2, 512'); a('s_cbranch_scc1 L_k2_side')
    a('s_endpgm')
    if side:
        a('L_k2_side:'); pack_win(a, 256)
    a('L_k2_p2:')
    p2(a)
    return dict(name='k2_kernel', body=a.text(), grid=512 if side else 256, block=256, lds=32768, vgpr=256, acc=256, sgpr=64)
def gen_k3(side=True):
    a = Asm()
    a('s_cmp_lt_u32 s2, 256'); a('s_cbranch_scc1 L_k3_p3')
    if side:
        a('s_cmp_lt_u32 s2, 512'); a('s_cbranch_scc1 L_k3_side')
    a('s_endpgm')
    if side:
        a('L_k3_side:'); pack_wout_touch(a, 256)
    a('L_k3_p3:')
    p3(a)
    return dict(name='k3_kernel', body=a.text(), grid=512 if side else 256, block=256, lds=16384, vgpr=240, acc=240, sgpr=64)

def gen_k1():
    a = Asm()
    a('s_cmp_lt_u32 s2, 256'); a('s_cbranch_scc1 L_k1_p1')
    a('s_cmp_lt_u32 s2, 320'); a('s_cbranch_scc1 L_k1_wp')
    a('s_endpgm')
    a('L_k1_wp:')
    wprep(a, 256)
    a('L_k1_p1:')
    p1(a)
    return dict(name='k1_kernel', body=a.text(), grid=320, block=256, lds=2*33*1024+1024, vgpr=240, acc=240, sgpr=64)

if __name__ == '__main__':
    open('k1.s', 'w').write(module([gen_k1()]))
    open('k2.s', 'w').write(module([gen_k2()]))
    open('k3.s', 'w').write(module([gen_k3()]))
```

```python
from gen_common import *

MF16 = 'v_mfma_f32_16x16x32_bf16'
GC0 = -2.0 * 0.7978845608028654 * 1.4426950408889634
GC1 = GC0 * 0.044715
SENT = '0xbf800000'

def gelu_pairs(a, pairs, tmp, sC1, vC0, vOne, round_in=True):
    n = len(pairs)
    T = [tmp + 2*i for i in range(n)]; E = [tmp + 2*n + 2*i for i in range(n)]
    if round_in:
        for i, x in enumerate(pairs): a(f'v_cvt_pk_bf16_f32 v{T[i]}, v{x}, v{x+1}')
        for i, x in enumerate(pairs):
            a(f'v_lshlrev_b32 v{x}, 16, v{T[i]}'); a(f'v_and_b32 v{x+1}, 0xffff0000, v{T[i]}')
    for i, x in enumerate(pairs): a(f'v_pk_mul_f32 v[{T[i]}:{T[i]+1}], v[{x}:{x+1}], v[{x}:{x+1}]')
    for i, x in enumerate(pairs): a(f'v_pk_fma_f32 v[{T[i]}:{T[i]+1}], v[{T[i]}:{T[i]+1}], s[{sC1}:{sC1+1}], v[{vC0}:{vC0+1}]')
    for i, x in enumerate(pairs): a(f'v_pk_mul_f32 v[{T[i]}:{T[i]+1}], v[{T[i]}:{T[i]+1}], v[{x}:{x+1}]')
    for i, x in enumerate(pairs):
        a(f'v_exp_f32 v{E[i]}, v{T[i]}'); a(f'v_exp_f32 v{E[i]+1}, v{T[i]+1}')
    for i, x in enumerate(pairs): a(f'v_pk_add_f32 v[{E[i]}:{E[i]+1}], v[{E[i]}:{E[i]+1}], v[{vOne}:{vOne+1}]')
    for i, x in enumerate(pairs):
        a(f'v_rcp_f32 v{E[i]}, v{E[i]}'); a(f'v_rcp_f32 v{E[i]+1}, v{E[i]+1}')
    if n == 1: a('s_nop 0')
    for i, x in enumerate(pairs): a(f'v_pk_mul_f32 v[{x}:{x+1}], v[{x}:{x+1}], v[{E[i]}:{E[i]+1}]')

def row16_reduce(v):
    return [f'v_add_f32_dpp v{v}, v{v}, v{v} row_ror:8 row_mask:0xf bank_mask:0xf',
            f'v_add_f32_dpp v{v}, v{v}, v{v} row_ror:4 row_mask:0xf bank_mask:0xf',
            f'v_add_f32_dpp v{v}, v{v}, v{v} row_ror:2 row_mask:0xf bank_mask:0xf',
            f'v_add_f32_dpp v{v}, v{v}, v{v} row_ror:1 row_mask:0xf bank_mask:0xf']

def gen_gemm(kind, diag=False, NS=4, prio=0):
    a = Asm()
    P = f'L_g{kind}_'
    NU = 4 if kind == 3 else 7
    NSTEP = 28 if kind == 3 else 32
    FSZ = 2*NU*1024
    SLOT = 16384 + FSZ
    TOK, FEAT = 0, 16384
    S_T, S_F, S_A, S_O, S_B, S_C = 8, 12, 16, 20, 24, 48
    sW, sTB, sFB, sKT, sKF, sM0T, sM0F = 28, 29, 30, 31, 32, 33, 34
    vL = 14
    a('s_cmp_ge_u32 s2, 256')
    a(f's_cbranch_scc1 {P}end')
    a(f"s_load_dwordx2 s[4:5], s[0:1], {KA['ws']}")
    if kind == 2: a(f"s_load_dwordx4 s[44:47], s[0:1], {KA['wsp']}")
    if kind == 3: a(f"s_load_dwordx2 s[44:45], s[0:1], {KA['out']}")
    if diag: stamp(a, 40)
    a(f'v_lshrrev_b32 v1, 6, v0')
    a(f'v_and_b32 v{vL}, 63, v0')
    a(f'v_readfirstlane_b32 s35, v1')
    a('s_and_b32 s3, s2, 7'); a('s_lshr_b32 s36, s2, 3')
    if kind == 1:
        a(f's_and_b32 s{sTB}, s3, 1'); a(f's_lshl_b32 s{sTB}, s{sTB}, 3'); a('s_and_b32 s38, s36, 7'); a(f's_add_u32 s{sTB}, s{sTB}, s38')
        a(f's_lshr_b32 s{sFB}, s3, 1'); a(f's_lshl_b32 s{sFB}, s{sFB}, 2'); a('s_lshr_b32 s38, s36, 3'); a(f's_add_u32 s{sFB}, s{sFB}, s38')
    else:
        a(f's_lshr_b32 s{sTB}, s3, 1'); a(f's_lshl_b32 s{sTB}, s{sTB}, 2'); a('s_and_b32 s38, s36, 3'); a(f's_add_u32 s{sTB}, s{sTB}, s38')
        a(f's_and_b32 s{sFB}, s3, 1'); a(f's_lshl_b32 s{sFB}, s{sFB}, 3'); a('s_lshr_b32 s38, s36, 2'); a(f's_add_u32 s{sFB}, s{sFB}, s38')
    a(f's_and_b32 s{sW}, s35, 3')
    a(f's_cmp_ge_u32 s35, 4')
    a(f's_cbranch_scc0 {P}compute')
    vTD = [2, 3, 4, 5]; vFD = 6
    if kind != 3:
        pitch_sh = 11 if kind == 1 else 12
        a(f'v_lshrrev_b32 v1, 3, v{vL}')
        a(f's_lshl_b32 s38, s{sTB}, 7'); a(f's_lshl_b32 s39, s{sW}, 5'); a('s_add_u32 s38, s38, s39')
        a(f'v_add_u32 v1, s38, v1')
        a(f'v_lshlrev_b32 v1, {pitch_sh}, v1')
        a(f'v_and_b32 v7, 7, v{vL}'); a(f'v_bfe_u32 v15, v{vL}, 4, 1'); a(f'v_xor_b32 v7, v7, v15')
        for m in range(4):
            a(f'v_xor_b32 v15, {m << 1}, v7'); a(f'v_lshlrev_b32 v15, 4, v15'); a(f'v_add_u32 v15, v15, v1')
            a(f'v_add_u32 v{vTD[m]}, {m * 8 * (1 << pitch_sh) - m * 1024}, v15')
        KT_STEP = 128
        a(f's_mov_b32 s{sKT}, 0')
        a(f's_lshl_b32 s38, s{sW}, 2'); a(f's_cmp_eq_u32 s{sW}, 3'); a(f's_cselect_b32 s38, 11, s38')
        a(f's_lshl_b32 s38, s38, 10')
        a(f'v_lshlrev_b32 v{vFD}, 4, v{vL}'); a(f'v_add_u32 v{vFD}, s38, v{vFD}')
        a(f's_add_u32 s{sM0F}, s38, {FEAT}')
        a(f's_cmp_lt_u32 s{sW}, 2'); a(f's_cselect_b64 vcc, -1, 0')
        if kind == 1:
            a(f's_add_u32 s38, s{sFB}, 16'); a(f's_mul_i32 s{sKF}, s38, {32*7*1024}')
            a(f's_mul_i32 s37, s{sFB}, {32*7*1024}')
        else:
            a(f's_mul_i32 s{sKF}, s{sFB}, {64*7*1024}')
        NPER = 7
    else:
        a(f'v_lshlrev_b32 v{vTD[0]}, 4, v{vL}')
        a(f'v_add_u32 v{vTD[1]}, {112*512 - 2048}, v{vTD[0]}')
        a(f's_lshl_b32 s38, s{sTB}, 2'); a(f's_add_u32 s38, s38, s{sW}'); a(f's_mul_i32 s{sKT}, s38, {2*112*512}')
        KT_STEP = 2048
        a(f's_lshl_b32 s38, s{sW}, 11')
        a(f'v_lshlrev_b32 v{vFD}, 4, v{vL}'); a(f'v_add_u32 v{vFD}, s38, v{vFD}')
        a(f's_add_u32 s{sM0F}, s38, {FEAT}')
        a(f's_mul_i32 s{sKF}, s{sFB}, {56*4*1024}')
        NPER = 6
    a(f's_lshl_b32 s{sM0T}, s{sW}, 12')
    a('s_waitcnt lgkmcnt(0)')
    if kind == 1:
        srd_ws(a, S_T, 4, WS_HN, 4*MB); srd_ws(a, S_F, 4, WS_WINP, SZ_WINP)
    elif kind == 2:
        srd(a, S_T, 44, 2048*4096); srd_ws(a, S_F, 4, WS_Z2N, SZ_Z)
    else:
        srd_ws(a, S_T, 4, WS_P, SZ_Z); srd_ws(a, S_F, 4, WS_WOUTP, SZ_WOUTP)
    uid = [0]
    def dma(slot):
        a(f's_add_u32 m0, s{sM0T}, {slot*SLOT + TOK}')
        a(f's_add_u32 s38, s{sM0F}, {slot*SLOT}')
        if kind != 3:
            for m in range(4):
                a(f'buffer_load_dwordx4 v{vTD[m]}, s[{S_T}:{S_T+3}], s{sKT} offen offset:{m*1024} lds')
        else:
            for m in range(4):
                a(f'buffer_load_dwordx4 v{vTD[m>>1]}, s[{S_T}:{S_T+3}], s{sKT} offen offset:{m*1024} lds')
        a('s_mov_b32 m0, s38')
        a(f's_add_u32 s{sKT}, s{sKT}, {KT_STEP}')
        if kind != 3:
            for m in range(3):
                a(f'buffer_load_dwordx4 v{vFD}, s[{S_F}:{S_F+3}], s{sKF} offen offset:{m*1024} lds')
            uid[0] += 1
            lbl = f'{P}skip{uid[0]}'
            a(f's_cbranch_vccz {lbl}')
            a(f'buffer_load_dwordx4 v{vFD}, s[{S_F}:{S_F+3}], s{sKF} offen offset:3072 lds')
            a(f'{lbl}:')
        else:
            for m in range(2):
                a(f'buffer_load_dwordx4 v{vFD}, s[{S_F}:{S_F+3}], s{sKF} offen offset:{m*1024} lds')
        a(f's_add_u32 s{sKF}, s{sKF}, {FSZ}')
    dma(0); dma(1)
    a(f's_waitcnt vmcnt({NPER})')
    a('s_barrier')
    for s in range(2, NS): dma(s)
    def lloop(lbl, iters):
        a(f's_mov_b32 s39, {iters}')
        a(f'{lbl}:')
        for s in range(NS):
            a(f's_waitcnt vmcnt({NPER*(NS-2)})')
            a('s_barrier')
            dma(s)
        a('s_sub_u32 s39, s39, 1'); a('s_cmp_lg_u32 s39, 0'); a(f's_cbranch_scc1 {lbl}')
    if kind == 1:
        lloop(f'{P}lloopA', (16 - NS)//NS)
        a(f's_mov_b32 s{sKT}, 0'); a(f's_mov_b32 s{sKF}, s37')
        lloop(f'{P}lloopB', 16//NS)
    else:
        lloop(f'{P}lloop', (NSTEP - NS)//NS)
    for s in range(NS - 1):
        a(f's_waitcnt vmcnt({NPER*max(NS-2-s, 0)})')
        a('s_barrier')
    a('s_endpgm')
    a(f'{P}compute:')
    a.clear_prot()
    if prio: a(f's_setprio {prio}')
    TF = [[16, 20], [24, 28]]
    FF = [[32 + 4*u for u in range(NU)], [60 + 4*u for u in range(NU)]]
    ACC = [88, 144]
    X0 = 200
    acc = lambda p, mt, u: ACC[p] + (mt*NU+u)*4
    vTR = [[8, 9], [10, 11]]; vFR = [12, 13]
    a(f's_lshl_b32 s39, s{sW}, 5')
    a(f'v_and_b32 v1, 15, v{vL}')
    a(f'v_lshrrev_b32 v7, 2, v1'); a(f'v_lshlrev_b32 v7, 3, v7')
    a(f'v_and_b32 v15, 3, v1'); a(f'v_add_u32 v7, v7, v15')
    a(f'v_add_u32 v7, s39, v7')
    a(f's_lshl_b32 s38, s{sTB}, 7')
    a(f'v_add_u32 v2, s38, v7')
    if kind != 3:
        a(f'v_lshlrev_b32 v7, 7, v7')
        a(f'v_lshrrev_b32 v1, 1, v1'); a(f'v_lshrrev_b32 v15, 4, v{vL}')
        a(f'v_xor_b32 v1, v1, v15'); a(f'v_lshlrev_b32 v1, 4, v1')
        a(f'v_add_u32 v{vTR[0][0]}, v7, v1')
        a(f'v_xor_b32 v{vTR[0][1]}, 64, v{vTR[0][0]}')
        a(f'v_add_u32 v{vTR[1][0]}, {2*SLOT}, v{vTR[0][0]}')
        a(f'v_add_u32 v{vTR[1][1]}, {2*SLOT}, v{vTR[0][1]}')
    else:
        a(f'v_lshlrev_b32 v{vTR[0][0]}, 3, v{vL}'); a(f's_lshl_b32 s38, s{sW}, 12'); a(f'v_add_u32 v{vTR[0][0]}, s38, v{vTR[0][0]}')
    a(f'v_lshlrev_b32 v{vFR[0]}, 4, v{vL}')
    a(f'v_add_u32 v{vFR[0]}, {FEAT}, v{vFR[0]}')
    a(f'v_add_u32 v{vFR[1]}, {2*SLOT}, v{vFR[0]}')
    for p in range(2 if kind == 1 else 1):
        for i in range(2*NU*4): a(f'v_mov_b32 v{ACC[p]+i}, 0')
    a('s_waitcnt lgkmcnt(0)')
    if kind != 3:
        a(f's_lshl_b32 s38, s{sTB}, 2'); a(f's_add_u32 s38, s38, s{sW}'); a(f's_mul_i32 s38, s38, {2*112}')
        a(f's_mul_i32 s39, s{sFB}, 7'); a('s_add_u32 s38, s38, s39'); a('s_lshl_b32 s36, s38, 9')
        a(f's_add_u32 s37, s36, {112*512}')
        a(f'v_lshlrev_b32 v6, 3, v{vL}')
    if kind == 1:
        srd_ws(a, S_O, 4, WS_Z1, SZ_Z); srd_ws(a, S_A, 4, WS_Z2N, SZ_Z); srd_ws(a, S_B, 4, WS_ST, 16*16*128*8)
    elif kind == 2:
        srd_ws(a, S_A, 4, WS_Z1, SZ_Z); srd_ws(a, S_O, 4, WS_P, SZ_Z); srd(a, S_B, 46, 4096)
        a(f'v_lshlrev_b32 v2, 1, v2')
        a(f'buffer_load_ushort v4, v2, s[{S_B}:{S_B+3}], 0 offen')
        a(f'buffer_load_ushort v5, v2, s[{S_B}:{S_B+3}], 0 offen offset:8')
    else:
        srd_ws(a, S_A, 4, WS_H, 4*MB); srd(a, S_O, 44, 4*MB)
        a(f'v_lshlrev_b32 v2, 11, v2'); a(f'v_lshrrev_b32 v1, 4, v{vL}'); a(f'v_lshlrev_b32 v1, 4, v1'); a(f'v_add_u32 v2, v2, v1')
        a(f's_lshl_b32 s38, s{sFB}, 7'); a(f'v_add_u32 v2, s38, v2')
    def reads(slot, kappa, buf):
        sg, so = slot >> 1, (slot & 1) * SLOT
        r = []
        def tok(mt):
            if kind != 3:
                return f'ds_read_b128 v[{TF[buf][mt]}:{TF[buf][mt]+3}], v{vTR[sg][kappa]} offset:{so + mt*512}'
            o = (slot*SLOT + TOK + mt*2048 + kappa*1024)//512
            return f'ds_read2st64_b64 v[{TF[buf][mt]}:{TF[buf][mt]+3}], v{vTR[0][0]} offset0:{o} offset1:{o+1}'
        fe = lambda u: f'ds_read_b128 v[{FF[buf][u]}:{FF[buf][u]+3}], v{vFR[sg]} offset:{so + (kappa*NU+u)*1024}'
        r += [tok(0), fe(0), tok(1)] + [fe(u) for u in range(1, NU)]
        return r
    def mfmas(buf, p=0, transposed=False):
        r = []
        for u in range(NU):
            for mt in range(2):
                d = acc(p, mt, u)
                x, y = (TF[buf][mt], FF[buf][u]) if transposed else (FF[buf][u], TF[buf][mt])
                r.append(f'{MF16} v[{d}:{d+3}], v[{x}:{x+3}], v[{y}:{y+3}], v[{d}:{d+3}]')
        return r
    a('s_barrier')
    if diag: stamp(a, 42)
    for r in reads(0, 0, 0): a(r)
    def step(slot, p=0, tr=False, bar=True, pre=True, extra=[]):
        a('s_waitcnt lgkmcnt(0)')
        for ins in interleave(mfmas(0, p, tr), reads(slot, 1, 1)): a(ins)
        a('s_waitcnt lgkmcnt(0)')
        if bar: a('s_barrier')
        for ins in interleave(mfmas(1, p, tr), (reads((slot + 1) % NS, 0, 0) if pre else []) + extra): a(ins)
    def cloop(lbl, iters, p, tr):
        a(f's_mov_b32 s39, {iters}')
        a(f'{lbl}:')
        for s in range(NS): step(s, p, tr)
        a('s_sub_u32 s39, s39, 1'); a('s_cmp_lg_u32 s39, 0'); a(f's_cbranch_scc1 {lbl}')
    if kind == 1:
        vC0, vOne, sC1 = 2, 4, 44
        cloop(f'{P}loopA', 16//NS, 0, True)
        a(f'v_mov_b32 v{vC0}, {fconst(GC0)}'); a(f'v_mov_b32 v{vC0+1}, {fconst(GC0)}')
        a(f'v_mov_b32 v{vOne}, 1.0'); a(f'v_mov_b32 v{vOne+1}, 1.0')
        a(f's_mov_b32 s{sC1}, {fconst(GC1)}'); a(f's_mov_b32 s{sC1+1}, {fconst(GC1)}')
        a('s_nop 7')
        TMP = X0
        ST = X0 + 16
        for u in range(NU):
            prs = [acc(0, mt, u) + o for mt in range(2) for o in (0, 2)]
            gelu_pairs(a, prs, TMP, sC1, vC0, vOne)
            for i, x in enumerate(prs): a(f'v_cvt_pk_bf16_f32 v{TMP+i}, v{x}, v{x+1}')
            for i, x in enumerate(prs):
                a(f'v_lshlrev_b32 v{x}, 16, v{TMP+i}'); a(f'v_and_b32 v{x+1}, 0xffff0000, v{TMP+i}')
            for mt in range(2):
                for r in range(4):
                    e = 4*mt + r; x = acc(0, mt, u) + r
                    if u == 0:
                        a(f'v_mov_b32 v{ST+2*e}, v{x}'); a(f'v_mul_f32 v{ST+2*e+1}, v{x}, v{x}')
                    else:
                        a(f'v_add_f32 v{ST+2*e}, v{ST+2*e}, v{x}'); a(f'v_fmac_f32 v{ST+2*e+1}, v{x}, v{x}')
        a('s_nop 1')
        rr(a, [row16_reduce(ST+i) for i in range(16)])
        a(f's_lshl_b32 s38, s{sTB}, 4'); a(f's_add_u32 s38, s38, s{sFB}'); a('s_lshl_b32 s38, s38, 10')
        a(f's_lshl_b32 s39, s{sW}, 8'); a('s_add_u32 s46, s38, s39')
        a(f'v_lshrrev_b32 v7, 4, v{vL}'); a('v_lshlrev_b32 v7, 6, v7')
        a(f'v_and_b32 v1, 15, v{vL}'); a('v_cmp_eq_u32 vcc, 0, v1')
        a('s_and_saveexec_b64 s[42:43], vcc') if not diag else a('s_and_saveexec_b64 s[50:51], vcc')
        for i in range(4):
            a(f'buffer_store_dwordx4 v[{ST+4*i}:{ST+4*i+3}], v7, s[{S_B}:{S_B+3}], s46 offen offset:{16*i} sc1')
        a('s_mov_b64 exec, -1')
        cloop(f'{P}loopB', (16 - NS)//NS, 1, False)
        for s in range(NS): step(s, 1, False, bar=(s != NS-1), pre=(s != NS-1))
        if diag: stamp(a, 44+8)
        a(f's_lshl_b32 s38, s{sTB}, 14'); a(f's_lshl_b32 s39, s{sW}, 8'); a('s_add_u32 s46, s38, s39')
        a(f'v_and_b32 v1, 15, v{vL}'); a('v_lshlrev_b32 v1, 10, v1'); a('v_add_u32 v7, v7, v1')
        a('s_movk_i32 s47, 20000')
        a(f'{P}poll:')
        for i in range(4):
            a(f'buffer_load_dwordx4 v[{ST+4*i}:{ST+4*i+3}], v7, s[{S_B}:{S_B+3}], s46 offen offset:{16*i} sc1')
        a('s_waitcnt vmcnt(0)')
        a(f'v_cmp_eq_u32 vcc, {SENT}, v{ST+1}')
        for e in range(1, 8):
            a(f'v_cmp_eq_u32 s[38:39], v{ST+2*e+1}, v15') if False else None
        a(f'v_mov_b32 v15, {SENT}')
        for e in range(1, 8):
            a(f'v_cmp_eq_u32 s[38:39], v{ST+2*e+1}, v15'); a('s_nop 0'); a('s_or_b64 vcc, vcc, s[38:39]')
        a(f's_cbranch_vccz {P}polled')
        a('s_sleep 2')
        a('s_sub_u32 s47, s47, 1'); a('s_cmp_lg_u32 s47, 0')
        a(f's_cbranch_scc1 {P}poll')
        a(f'{P}polled:')
        rr(a, [row16_reduce(ST+i) for i in range(16)])
        ch = []
        for e in range(8):
            m, q = ST+2*e, ST+2*e+1
            t = TMP + e
            ch.append([f'v_mul_f32 v{m}, {fconst(1/1792)}, v{m}',
                       f'v_mul_f32 v{q}, {fconst(1/1792)}, v{q}',
                       f'v_fma_f32 v{q}, -v{m}, v{m}, v{q}',
                       f'v_max_f32 v{q}, 0, v{q}',
                       f'v_cvt_pk_bf16_f32 v{t}, v{q}, v{m}',
                       f'v_and_b32 v{m}, 0xffff0000, v{t}',
                       f'v_lshlrev_b32 v{q}, 16, v{t}',
                       f'v_add_f32 v{q}, {fconst(1e-5)}, v{q}',
                       f'v_cvt_pk_bf16_f32 v{q}, v{q}, v{q}',
                       f'v_lshlrev_b32 v{q}, 16, v{q}',
                       f'v_sqrt_f32 v{q}, v{q}',
                       f'v_cvt_pk_bf16_f32 v{q}, v{q}, v{q}',
                       f'v_lshlrev_b32 v{q}, 16, v{q}',
                       f'v_rcp_f32 v{q}, v{q}'])
        rr(a, ch)
        a('s_nop 0')
        a(f's_lshl_b32 s38, s{sFB}, 6'); a(f's_lshl_b32 s39, s{sTB}, 2'); a('s_add_u32 s38, s38, s39'); a(f's_add_u32 s38, s38, s{sW}')
        a('s_mul_i32 s46, s38, 7168')
        a(f'v_lshlrev_b32 v7, 4, v{vL}')
        for u in range(NU):
            for mt in range(2):
                for r in range(4):
                    e = 4*mt + r; x = acc(0, mt, u) + r
                    a(f'v_sub_f32 v{x}, v{x}, v{ST+2*e}')
            for mt in range(2):
                for o in (0, 2):
                    x = acc(0, mt, u) + o
                    a(f'v_cvt_pk_bf16_f32 v{TMP+2*mt+(o>>1)}, v{x}, v{x+1}')
            for mt in range(2):
                for o in (0, 2):
                    x = acc(0, mt, u) + o; t = TMP+2*mt+(o>>1); e = 4*mt + o
                    a(f'v_lshlrev_b32 v{x}, 16, v{t}'); a(f'v_and_b32 v{x+1}, 0xffff0000, v{t}')
                    a(f'v_mul_f32 v{x}, v{x}, v{ST+2*e+1}'); a(f'v_mul_f32 v{x+1}, v{x+1}, v{ST+2*(e+1)+1}')
            d = TMP + 4 + (u & 1)*4
            for mt in range(2):
                for o in (0, 2):
                    x = acc(0, mt, u) + o
                    a(f'v_cvt_pk_bf16_f32 v{d+2*mt+(o>>1)}, v{x}, v{x+1}')
            a(f's_add_u32 s38, s46, {u*1024}')
            a(f'buffer_store_dwordx4 v[{d}:{d+3}], v7, s[{S_A}:{S_A+3}], s38 offen')
        for u in range(NU):
            prs = [acc(1, mt, u) + o for mt in range(2) for o in (0, 2)]
            gelu_pairs(a, prs, TMP, sC1, vC0, vOne)
            for mt in range(2):
                x = acc(1, mt, u); d = ST + ((u*2+mt) & 7)*2
                a(f'v_cvt_pk_bf16_f32 v{d}, v{x}, v{x+1}'); a(f'v_cvt_pk_bf16_f32 v{d+1}, v{x+2}, v{x+3}')
                a(f'buffer_store_dwordx2 v[{d}:{d+1}], v6, s[{S_O}:{S_O+3}], s{36+mt} offen offset:{u*512}')
    elif kind == 2:
        ZR = 144
        cloop(f'{P}loop', (NSTEP - NS)//NS, 0, False)
        zl = []
        for mt in range(2):
            for u in range(7):
                z = ZR + (mt*7+u)*2
                zl.append(f'buffer_load_dwordx2 v[{z}:{z+1}], v6, s[{S_A}:{S_A+3}], s{36+mt} offen offset:{u*512}')
        for s in range(NS):
            step(s, 0, False, bar=(s != NS-1), pre=(s != NS-1), extra=zl[s*5:(s+1)*5] if s < 3 else [])
        if diag: stamp(a, 52)
        a('s_waitcnt vmcnt(0)')
        a('v_lshlrev_b32 v4, 16, v4'); a('v_lshlrev_b32 v5, 16, v5')
        for mt in range(2):
            for u in range(7):
                z = ZR + (mt*7+u)*2; d = acc(0, mt, u); b = 4 + mt
                a(f'v_cvt_pk_bf16_f32 v8, v{d}, v{d+1}'); a(f'v_cvt_pk_bf16_f32 v9, v{d+2}, v{d+3}')
                a(f'v_lshlrev_b32 v{d}, 16, v8'); a(f'v_and_b32 v{d+1}, 0xffff0000, v8')
                a(f'v_lshlrev_b32 v{d+2}, 16, v9'); a(f'v_and_b32 v{d+3}, 0xffff0000, v9')
                for r in range(4): a(f'v_add_f32 v{d+r}, v{d+r}, v{b}')
                a(f'v_cvt_pk_bf16_f32 v8, v{d}, v{d+1}'); a(f'v_cvt_pk_bf16_f32 v9, v{d+2}, v{d+3}')
                a(f'v_lshlrev_b32 v{d}, 16, v8'); a(f'v_and_b32 v{d+1}, 0xffff0000, v8')
                a(f'v_lshlrev_b32 v{d+2}, 16, v9'); a(f'v_and_b32 v{d+3}, 0xffff0000, v9')
                a(f'v_lshlrev_b32 v8, 16, v{z}'); a(f'v_and_b32 v9, 0xffff0000, v{z}')
                a(f'v_lshlrev_b32 v10, 16, v{z+1}'); a(f'v_and_b32 v11, 0xffff0000, v{z+1}')
                a(f'v_pk_mul_f32 v[{d}:{d+1}], v[{d}:{d+1}], v[8:9]'); a(f'v_pk_mul_f32 v[{d+2}:{d+3}], v[{d+2}:{d+3}], v[10:11]')
                a(f'v_cvt_pk_bf16_f32 v{z}, v{d}, v{d+1}'); a(f'v_cvt_pk_bf16_f32 v{z+1}, v{d+2}, v{d+3}')
                a(f'buffer_store_dwordx2 v[{z}:{z+1}], v6, s[{S_O}:{S_O+3}], s{36+mt} offen offset:{u*512}')
    else:
        HR = 144
        cloop(f'{P}loop', (NSTEP - NS)//NS, 0, False)
        hl = []
        for mt in range(2):
            for p in range(2):
                h = HR + (mt*2+p)*4
                hl.append(f'buffer_load_dwordx4 v[{h}:{h+3}], v2, s[{S_A}:{S_A+3}], 0 offen offset:{p*64}' if mt == 0 else
                          f'buffer_load_dwordx4 v[{h}:{h+3}], v2, s[{S_A}:{S_A+3}], s37 offen offset:{p*64}')
        a('s_movk_i32 s37, 8192')
        for s in range(NS):
            step(s, 0, False, bar=(s != NS-1), pre=(s != NS-1), extra=hl if s == 0 else [])
        if diag: stamp(a, 52)
        a('s_waitcnt vmcnt(0)')
        a('s_nop 7')
        for mt in range(2):
            for p in range(2):
                h = HR + (mt*2+p)*4
                for uu in range(2):
                    d = acc(0, mt, 2*p+uu)
                    a(f'v_cvt_pk_bf16_f32 v8, v{d}, v{d+1}'); a(f'v_cvt_pk_bf16_f32 v9, v{d+2}, v{d+3}')
                    a(f'v_lshlrev_b32 v{d}, 16, v8'); a(f'v_and_b32 v{d+1}, 0xffff0000, v8')
                    a(f'v_lshlrev_b32 v{d+2}, 16, v9'); a(f'v_and_b32 v{d+3}, 0xffff0000, v9')
                    a(f'v_lshlrev_b32 v8, 16, v{h+2*uu}'); a(f'v_and_b32 v9, 0xffff0000, v{h+2*uu}')
                    a(f'v_lshlrev_b32 v10, 16, v{h+2*uu+1}'); a(f'v_and_b32 v11, 0xffff0000, v{h+2*uu+1}')
                    a(f'v_pk_add_f32 v[{d}:{d+1}], v[{d}:{d+1}], v[8:9]'); a(f'v_pk_add_f32 v[{d+2}:{d+3}], v[{d+2}:{d+3}], v[10:11]')
                    a(f'v_cvt_pk_bf16_f32 v{h+2*uu}, v{d}, v{d+1}'); a(f'v_cvt_pk_bf16_f32 v{h+2*uu+1}, v{d+2}, v{d+3}')
                so = '0' if mt == 0 else 's37'
                a(f'buffer_store_dwordx4 v[{h}:{h+3}], v2, s[{S_O}:{S_O+3}], {so} offen offset:{p*64}')
    if diag:
        a('s_waitcnt vmcnt(0)')
        stamp(a, 54)
        a('s_waitcnt lgkmcnt(0)')
        srd_ws(a, 56, 4, WS_DIAG + kind*65536, 65536)
        a('s_sub_u32 s42, s42, s40'); a('s_sub_u32 s52, s52, s40'); a('s_sub_u32 s54, s54, s40')
        a('v_mov_b32 v8, s42'); a('v_mov_b32 v9, s52'); a('v_mov_b32 v10, s54'); a('v_mov_b32 v11, s40')
        a(f's_lshl_b32 s38, s2, 2'); a(f's_add_u32 s38, s38, s{sW}'); a('s_lshl_b32 s38, s38, 4')
        a('v_mov_b32 v3, s38')
        a('buffer_store_dwordx4 v[8:11], v3, s[56:59], 0 offen')
    a(f'{P}end:')
    a('s_endpgm')
    nv = {1: 240, 2: 176, 3: 160}[kind]
    return dict(name=f'k{kind+3}_kernel', body=a.text(), grid=256, block=512, lds=NS*SLOT, vgpr=nv, acc=nv, sgpr=80)

if __name__ == '__main__':
    for k in (1, 2, 3):
        open(f'k{k+3}.s', 'w').write(module([gen_gemm(k, diag=True)]))
```

```python
import sys
from gen_common import *
import gen_fft, gen_gemm
HEADER = '''; sequential_preLN -> GFNet spectral filter -> preLN -> gMLP, as a list of six launches.
'''
def build(diag=False):
    ks = [gen_fft.gen_k1(), gen_fft.gen_k2(), gen_fft.gen_k3()] + [gen_gemm.gen_gemm(k, diag=diag) for k in (1, 2, 3)]
    return module(ks, header=HEADER)
if __name__ == '__main__':
    out = sys.argv[1] if len(sys.argv) > 1 else 'sequential_preLN__spectral_gfnet__mixer_gmlp__prompt.s'
    txt = build(diag=('diag' in sys.argv))
    open(out, 'w').write(txt)
    print(len(txt), 'bytes')
```

```python
import sys
from gen_common import *
import gen_fft, gen_gemm, gen_all
def empty(name='e_kernel', grid=256):
    a = Asm(); a('s_endpgm')
    return dict(name=name, body=a.text(), grid=grid, block=256, lds=0, vgpr=32, acc=32, sgpr=32)
ks = [gen_fft.gen_k1(), gen_fft.gen_k2(), gen_fft.gen_k3()] + [gen_gemm.gen_gemm(k) for k in (1, 2, 3)]
open('v_base.s', 'w').write(module(ks, header=gen_all.HEADER))
open('v_plus6.s', 'w').write(module(ks + [empty()]*6, header=gen_all.HEADER))
open('v_plus12.s', 'w').write(module(ks + [empty()]*12, header=gen_all.HEADER))
```

```python
from asmlib import Asm, srd, module
MB = 1 << 20
WS_XD, WS_YD, WS_WT, WS_H, WS_HN = 0, 4*MB, 8*MB, 12*MB, 16*MB
WS_Z1, WS_Z2N, WS_P, WS_ST, WS_DIAG = 20*MB, 28*MB, 36*MB, 44*MB, 48*MB
SZ_Z = 2048*1792*2
KA = dict(x=0, wr=8, wi=16, bx=24, win=32, wsp=40, bsp=48, wout=56, out=64, dbg=72, ws=80)

def srd_ws(a, dst, wsbase, off, nbytes):
    a(f's_add_u32 s{dst}, s{wsbase}, {off}')
    a(f's_addc_u32 s{dst+1}, s{wsbase+1}, 0')
    a(f's_and_b32 s{dst+1}, s{dst+1}, 0xffff')
    a(f's_mov_b32 s{dst+2}, {nbytes}')
    a(f's_mov_b32 s{dst+3}, 0x20000')
    a.prot.update(range(dst, dst+4))

def interleave(main, fill, start=0, per=1):
    out = []
    fi = 0
    for i, m in enumerate(main):
        out.append(m)
        if i >= start:
            for _ in range(per):
                if fi < len(fill):
                    out.extend(fill[fi] if isinstance(fill[fi], list) else [fill[fi]]); fi += 1
    while fi < len(fill):
        out.extend(fill[fi] if isinstance(fill[fi], list) else [fill[fi]]); fi += 1
    return out

def stamp(a, sreg):
    a(f's_memtime s[{sreg}:{sreg+1}]')

WS_WINP, WS_WOUTP = 52*MB, 60*MB
SZ_WINP, SZ_WOUTP = 1024*3584*2, 1792*1024*2

def rr(a, chains, gap=3):
    n = max(len(c) for c in chains)
    for i in range(n):
        cnt = 0
        for c in chains:
            if i < len(c): a(c[i]); cnt += 1
        if i < n - 1 and cnt < gap: a(f's_nop {gap - cnt - 1}')

def reduce_chain(v):
    return [f'v_add_f32_dpp v{v}, v{v}, v{v} row_ror:8 row_mask:0xf bank_mask:0xf',
            f'v_add_f32_dpp v{v}, v{v}, v{v} row_ror:4 row_mask:0xf bank_mask:0xf',
            f'v_add_f32_dpp v{v}, v{v}, v{v} row_ror:2 row_mask:0xf bank_mask:0xf',
            f'v_add_f32_dpp v{v}, v{v}, v{v} row_ror:1 row_mask:0xf bank_mask:0xf',
            f'v_add_f32_dpp v{v}, v{v}, v{v} row_bcast:15 row_mask:0xa bank_mask:0xf',
            f'v_add_f32_dpp v{v}, v{v}, v{v} row_bcast:31 row_mask:0xc bank_mask:0xf']

def fconst(x):
    import struct
    return '0x%08x' % struct.unpack('<I', struct.pack('<f', x))[0]

def gen_cos_pairs(a, dsts, angle_fn, t0, t1):
    for i, d in enumerate(dsts):
        angle_fn(2*i, t0); angle_fn(2*i+1, t1)
        a(f'v_cos_f32 v{t0}, v{t0}'); a(f'v_cos_f32 v{t1}, v{t1}')
        a('s_nop 0')
        a(f'v_cvt_pk_bf16_f32 v{d}, v{t0}, v{t1}')


class Diag:
    def __init__(self, a, on, kid, base=64):
        self.a, self.on, self.kid, self.base, self.n = a, on, kid, base, 0
    def start(self):
        if not self.on: return
        self.a(f's_memtime s[{self.base}:{self.base+1}]'); self.a(f's_memrealtime s[{self.base+2}:{self.base+3}]'); self.n = 0
    def mark(self):
        if not self.on: return
        r = self.base + 6 + 2*self.n; self.n += 1
        self.a(f's_memtime s[{r}:{r+1}]')
    def dump(self, wsreg, sW, vt=2, nwave_shift=2):
        if not self.on: return
        a = self.a; b = self.base
        a('s_waitcnt vmcnt(0)')
        r = b + 6 + 2*self.n
        a(f's_memtime s[{r}:{r+1}]'); a(f's_memrealtime s[{b+4}:{b+5}]')
        a('s_waitcnt lgkmcnt(0)')
        a.prot -= set(range(96, 100))
        srd_ws(a, 96, wsreg, WS_DIAG + self.kid*131072, 131072)
        n = self.n + 1
        assert n <= 6
        for i in range(8): a(f'v_mov_b32 v{vt+i}, 0')
        for i in range(n):
            a(f's_sub_u32 s{b+6+2*i}, s{b+6+2*i}, s{b}'); a(f'v_mov_b32 v{vt+i}, s{b+6+2*i}')
        a(f'v_mov_b32 v{vt+6}, s{b+2}'); a(f'v_mov_b32 v{vt+7}, s{b+4}')
        a(f's_lshl_b32 s{b}, s2, {nwave_shift}'); a(f's_add_u32 s{b}, s{b}, s{sW}'); a(f's_lshl_b32 s{b}, s{b}, 5')
        a(f'v_mov_b32 v{vt+8}, s{b}')
        a(f'buffer_store_dwordx4 v[{vt}:{vt+3}], v{vt+8}, s[96:99], 0 offen')
        a(f'buffer_store_dwordx4 v[{vt+4}:{vt+7}], v{vt+8}, s[96:99], 0 offen offset:16')

_pfid = [0]
def code_prefetch(a, start, end, vA, vD, sP, vL, wave_off=None, backward=False):
    _pfid[0] += 1
    L = f'L_pf{_pfid[0]}'
    a(f's_getpc_b64 s[{sP}:{sP+1}]')
    a(f'{L}:')
    a(f's_add_u32 s{sP}, s{sP}, {start}-{L}')
    a(f's_addc_u32 s{sP+1}, s{sP+1}, {-1 if backward else 0}')
    a(f'v_lshlrev_b32 v{vA}, 7, v{vL}')
    if wave_off is not None:
        a(f's_lshl_b32 s{wave_off[1]}, s{wave_off[0]}, 13'); a(f'v_add_u32 v{vA}, s{wave_off[1]}, v{vA}')
    a(f'v_min_u32 v{vA}, {end}-{start}-4, v{vA}')
    a(f'v_mov_b32 v{vA+1}, s{sP+1}')
    a(f'v_add_co_u32 v{vA}, vcc, s{sP}, v{vA}')
    a(f'v_addc_co_u32 v{vA+1}, vcc, 0, v{vA+1}, vcc')
    a(f'global_load_dword v{vD}, v[{vA}:{vA+1}], off')

OPT = dict(st='', pf=True)
def stf(): return (' ' + OPT['st']) if OPT['st'] else ''
```

```python
from gen_common import *

EPS = 1e-5
MF32 = 'v_mfma_f32_32x32x16_bf16'

def mf(a, d, x, y, first=False):
    a(f'{MF32} v[{d}:{d+15}], v[{x}:{x+3}], v[{y}:{y+3}], ' + ('0' if first else f'v[{d}:{d+15}]'))

def lin_cos(a, dsts, offs, vstep, vbase, add, t0, t1):
    for i, d in enumerate(dsts):
        for k, t in ((2*i, t0), (2*i+1, t1)):
            a(f'v_mov_b32 v{t}, {fconst(float(offs[k]))}')
            a(f'v_fma_f32 v{t}, v{t}, v{vstep}, v{vbase}')
            if add: a(f'v_add_f32 v{t}, {fconst(add)}, v{t}')
        a(f'v_cos_f32 v{t0}, v{t0}'); a(f'v_cos_f32 v{t1}, v{t1}')
        a('s_nop 0')
        a(f'v_cvt_pk_bf16_f32 v{d}, v{t0}, v{t1}')

def sign_mask(a, dst, vL, bit):
    a(f'v_bfe_u32 v{dst}, v{vL}, {bit}, 1'); a(f'v_sub_u32 v{dst}, 0, v{dst}'); a(f'v_and_b32 v{dst}, 0x80008000, v{dst}')

def twiddle_tab(a, TC, TS, offs, vstep, vbase, t0, neg, scale=None):
    for rho in range(16):
        a(f'v_mov_b32 v{t0}, {fconst(float(offs[rho]))}')
        a(f'v_fma_f32 v{t0}, v{t0}, v{vstep}, v{vbase}')
        a(f'v_cos_f32 v{TC+rho}, v{t0}')
        a(f'v_sin_f32 v{TS+rho}, v{t0}')
    sc = 1.0 if scale is None else scale
    for rho in range(16):
        if scale is not None: a(f'v_mul_f32 v{TC+rho}, {fconst(sc)}, v{TC+rho}')
        if neg or scale is not None: a(f'v_mul_f32 v{TS+rho}, {fconst(-sc if neg else sc)}, v{TS+rho}')

def twiddle_apply(a, DR, DI, TC, TS, TR, TI, PR, PI):
    for p in range(8):
        o = 2*p
        a(f'v_pk_mul_f32 v[{TR+o}:{TR+o+1}], v[{DR+o}:{DR+o+1}], v[{TC+o}:{TC+o+1}]')
        a(f'v_pk_mul_f32 v[{TI+o}:{TI+o+1}], v[{DI+o}:{DI+o+1}], v[{TC+o}:{TC+o+1}]')
        a(f'v_pk_fma_f32 v[{TR+o}:{TR+o+1}], v[{DI+o}:{DI+o+1}], v[{TS+o}:{TS+o+1}], v[{TR+o}:{TR+o+1}] neg_lo:[1,0,0] neg_hi:[1,0,0]')
        a(f'v_pk_fma_f32 v[{TI+o}:{TI+o+1}], v[{DR+o}:{DR+o+1}], v[{TS+o}:{TS+o+1}], v[{TI+o}:{TI+o+1}]')
    for p in range(8):
        a(f'v_cvt_pk_bf16_f32 v{PR+p}, v{TR+2*p}, v{TR+2*p+1}')
        a(f'v_cvt_pk_bf16_f32 v{PI+p}, v{TI+2*p}, v{TI+2*p+1}')

def layernorm2(a, F, T, sbase, outP, vkeep=None):
    for r in range(2):
        s = T[r]
        a(f'v_add_f32 v{s}, v{F[r]}, v{F[r]+1}'); a(f'v_add_f32 v{s+1}, v{F[r]+2}, v{F[r]+3}')
        for i in range(2, 8):
            a(f'v_add_f32 v{s+(i&1)}, v{s+(i&1)}, v{F[r]+2*i}'); a(f'v_add_f32 v{s+(i&1)}, v{s+(i&1)}, v{F[r]+2*i+1}')
        a(f'v_add_f32 v{s}, v{s}, v{s+1}')
    a('s_nop 1')
    rr(a, [reduce_chain(T[0]), reduce_chain(T[1])])
    a('s_nop 1')
    for r in range(2): a(f'v_readlane_b32 s{sbase+r}, v{T[r]}, 63')
    a('s_nop 1')
    for r in range(2):
        a(f'v_mov_b32 v{T[r]+3}, s{sbase+r}')
        a(f'v_mul_f32 v{T[r]+3}, {fconst(1/1024)}, v{T[r]+3}')
    for r in range(2):
        s = T[r]
        a(f'v_sub_f32 v{s+1}, v{F[r]}, v{s+3}'); a(f'v_mul_f32 v{s}, v{s+1}, v{s+1}')
        for i in range(1, 16):
            a(f'v_sub_f32 v{s+1+(i&1)}, v{F[r]+i}, v{s+3}'); a(f'v_fmac_f32 v{s}, v{s+1+(i&1)}, v{s+1+(i&1)}')
    a('s_nop 1')
    rr(a, [reduce_chain(T[0]), reduce_chain(T[1])])
    a('s_nop 1')
    for r in range(2): a(f'v_readlane_b32 s{sbase+2+r}, v{T[r]}, 63')
    a('s_nop 1')
    ch = []
    for r in range(2):
        s = T[r]
        ch.append([f'v_mov_b32 v{s}, s{sbase+2+r}',
                   f'v_mul_f32 v{s}, {fconst(1/1024)}, v{s}',
                   f'v_cvt_pk_bf16_f32 v{s}, v{s}, v{s+3}',
                   f'v_and_b32 v{s+3}, 0xffff0000, v{s}',
                   f'v_lshlrev_b32 v{s}, 16, v{s}',
                   f'v_add_f32 v{s}, {fconst(EPS)}, v{s}',
                   f'v_cvt_pk_bf16_f32 v{s}, v{s}, v{s}',
                   f'v_lshlrev_b32 v{s}, 16, v{s}',
                   f'v_sqrt_f32 v{s}, v{s}',
                   f'v_cvt_pk_bf16_f32 v{s}, v{s}, v{s}',
                   f'v_lshlrev_b32 v{s}, 16, v{s}',
                   f'v_rcp_f32 v{s}, v{s}'])
    rr(a, ch, gap=2)
    a('s_nop 0')
    for r in range(2):
        s = T[r]; P = outP[r]
        for i in range(8):
            a(f'v_sub_f32 v{F[r]+2*i}, v{F[r]+2*i}, v{s+3}'); a(f'v_sub_f32 v{F[r]+2*i+1}, v{F[r]+2*i+1}, v{s+3}')
            a(f'v_cvt_pk_bf16_f32 v{P+i}, v{F[r]+2*i}, v{F[r]+2*i+1}')
        for i in range(8):
            a(f'v_lshlrev_b32 v{F[r]+2*i}, 16, v{P+i}'); a(f'v_and_b32 v{F[r]+2*i+1}, 0xffff0000, v{P+i}')
            a(f'v_mul_f32 v{F[r]+2*i}, v{F[r]+2*i}, v{s}'); a(f'v_mul_f32 v{F[r]+2*i+1}, v{F[r]+2*i+1}, v{s}')
            a(f'v_cvt_pk_bf16_f32 v{P+i}, v{F[r]+2*i}, v{F[r]+2*i+1}')

def unpack16(a, F, P):
    for i in range(8):
        a(f'v_lshlrev_b32 v{F+2*i}, 16, v{P+i}')
        a(f'v_and_b32 v{F+2*i+1}, 0xffff0000, v{P+i}')

OFF_I = [8*(e >> 2) + (e & 3) for e in range(8)]
OFF_R = [8*(rho >> 2) + (rho & 3) for rho in range(16)]

def lane_floats(a, vL, vK, vH, t):
    a(f'v_and_b32 v{t}, 31, v{vL}'); a(f'v_cvt_f32_u32 v{vK}, v{t}')
    a(f'v_lshrrev_b32 v{t}, 5, v{vL}'); a(f'v_cvt_f32_u32 v{vH}, v{t}')

def p1(a, diag=False):
    a.clear_prot()
    DG = Diag(a, diag, 0)
    DG.start()
    S_X, S_XD, sW = 8, 12, 16
    vL, t0, t1, t2, vK, vH, vB0, vSG = 1, 2, 3, 4, 6, 7, 8, 9
    CB = [10, 14]; NB = [18, 22]; A1 = [26, 30]; A2 = [34, 38]; TC, TS = 42, 58
    vNY = [74, 75]
    ROW = [80, 160]
    XN_LDS, S_LDS, SROW = 0, 16384, 2112
    a(f"s_load_dwordx2 s[4:5], s[0:1], {KA['x']}")
    a(f"s_load_dwordx2 s[6:7], s[0:1], {KA['ws']}")
    a(f'v_and_b32 v{vL}, 63, v0')
    a(f'v_lshrrev_b32 v{t0}, 6, v0')
    a('s_nop 0')
    a(f'v_readfirstlane_b32 s{sW}, v{t0}')
    if OPT['pf']: code_prefetch(a, 'L_k1_p1', 'L_k1_end', 250, 252, 40, vL, backward=True)
    a('s_lshr_b32 s17, s2, 6'); a('s_lshl_b32 s17, s17, 4')
    a('s_bfe_u32 s18, s2, 0x10005'); a('s_lshl_b32 s18, s18, 2'); a('s_add_u32 s17, s17, s18')
    a(f's_lshr_b32 s18, s{sW}, 1'); a('s_lshl_b32 s18, s18, 3'); a('s_add_u32 s17, s17, s18')
    a(f's_and_b32 s18, s{sW}, 1'); a('s_lshl_b32 s18, s18, 1'); a('s_add_u32 s17, s17, s18')
    a('s_lshl_b32 s17, s17, 5'); a('s_and_b32 s18, s2, 31'); a('s_add_u32 s17, s17, s18')
    a('s_lshl_b32 s20, s17, 11')
    a(f's_add_u32 s21, s20, {32*2048}')
    a(f'v_lshlrev_b32 v{t0}, 4, v{vL}')
    a('s_waitcnt lgkmcnt(0)')
    srd(a, S_X, 4, 2048*2048)
    srd_ws(a, S_XD, 6, WS_XD, 4*MB)
    for r in range(2):
        B = ROW[r]
        a(f'buffer_load_dwordx4 v[{B}:{B+3}], v{t0}, s[{S_X}:{S_X+3}], s{20+r} offen')
        a(f'buffer_load_dwordx4 v[{B+4}:{B+7}], v{t0}, s[{S_X}:{S_X+3}], s{20+r} offen offset:1024')
    if OPT['pf']: code_prefetch(a, 'k2_kernel', 'L_k2_end', 250, 253, 40, vL)
    lane_floats(a, vL, vK, vH, t1)
    a(f'v_mul_f32 v{t2}, {fconst(1/32)}, v{vK}')
    a(f'v_mul_f32 v{vB0}, {fconst(8.0)}, v{vH}'); a(f'v_mul_f32 v{vB0}, v{vB0}, v{t2}')
    lin_cos(a, [CB[0]+i for i in range(4)], list(range(8)), t2, vB0, 0.0, t0, t1)
    lin_cos(a, [NB[0]+i for i in range(4)], list(range(8)), t2, vB0, 0.25, t0, t1)
    sign_mask(a, vSG, vL, 0)
    for i in range(4):
        a(f'v_xor_b32 v{CB[1]+i}, v{vSG}, v{CB[0]+i}'); a(f'v_xor_b32 v{NB[1]+i}, v{vSG}, v{NB[0]+i}')
    a(f'v_bfe_u32 v{t0}, v{vL}, 1, 4'); a(f'v_cvt_f32_u32 v{t0}, v{t0}'); a(f'v_mul_f32 v{t2}, {fconst(1/32)}, v{t0}')
    a(f'v_and_b32 v{t0}, 1, v{vL}'); a(f'v_cvt_f32_u32 v{t0}, v{t0}'); a(f'v_mul_f32 v{t0}, {fconst(0.25)}, v{t0}')
    a(f'v_mul_f32 v{vB0}, 4.0, v{vH}'); a(f'v_fma_f32 v{vB0}, v{vB0}, v{t2}, v{t0}')
    lin_cos(a, [A1[0]+i for i in range(4)], OFF_I, t2, vB0, 0.0, t0, t1)
    lin_cos(a, [A2[0]+i for i in range(4)], OFF_I, t2, vB0, -0.25, t0, t1)
    sign_mask(a, vSG, vL, 1)
    for i in range(4):
        a(f'v_xor_b32 v{A1[1]+i}, v{vSG}, v{A1[0]+i}'); a(f'v_xor_b32 v{A2[1]+i}, v{vSG}, v{A2[0]+i}')
    a(f'v_mul_f32 v{t2}, {fconst(1/1024)}, v{vK}')
    a(f'v_mul_f32 v{vB0}, 4.0, v{vH}'); a(f'v_mul_f32 v{vB0}, v{vB0}, v{t2}')
    twiddle_tab(a, TC, TS, OFF_R, t2, vB0, t0, neg=True)
    DG.mark()
    a('s_waitcnt vmcnt(0)')
    DG.mark()
    F = [ROW[r] + 8 for r in range(2)]; T = [ROW[r] + 24 for r in range(2)]
    for r in range(2): unpack16(a, F[r], ROW[r])
    for r in range(2):
        v = vNY[r]
        a(f'v_sub_f32 v{v}, v{F[r]}, v{F[r]+1}')
        for i in range(1, 8):
            a(f'v_add_f32 v{v}, v{v}, v{F[r]+2*i}'); a(f'v_sub_f32 v{v}, v{v}, v{F[r]+2*i+1}')
    a('s_nop 1')
    rr(a, [reduce_chain(vNY[0]), reduce_chain(vNY[1])])
    a('s_nop 1')
    for r in range(2): a(f'v_readlane_b32 s{26+r}, v{vNY[r]}, 63')
    layernorm2(a, F, T, 28, ROW)
    for r in range(2):
        a(f'v_mul_f32 v{vNY[r]}, s{26+r}, v{T[r]}')
        a(f'v_cvt_pk_bf16_f32 v{vNY[r]}, 0, v{vNY[r]}')
    a(f's_lshl_b32 s22, s{sW}, 12')
    a(f'v_lshlrev_b32 v{t0}, 4, v{vL}'); a(f'v_add_u32 v{t0}, s22, v{t0}')
    for r in range(2):
        B = ROW[r]
        a(f'ds_write_b128 v{t0}, v[{B}:{B+3}] offset:{XN_LDS + r*2048}')
        a(f'ds_write_b128 v{t0}, v[{B+4}:{B+7}] offset:{XN_LDS + r*2048 + 1024}')
    a(f'v_lshrrev_b32 v{t1}, 5, v{vL}'); a(f'v_lshlrev_b32 v{t1}, 9, v{t1}')
    a(f'v_bfe_u32 v{t2}, v{vL}, 2, 2'); a(f'v_lshlrev_b32 v{t2}, 6, v{t2}'); a(f'v_add_u32 v{t1}, v{t1}, v{t2}')
    a(f'v_bfe_u32 v{t2}, v{vL}, 4, 1'); a(f'v_lshlrev_b32 v{t2}, 5, v{t2}'); a(f'v_add_u32 v{t1}, v{t1}, v{t2}')
    a(f'v_and_b32 v{t2}, 3, v{vL}'); a(f'v_lshlrev_b32 v{t2}, 3, v{t2}'); a(f'v_add_u32 v{t1}, v{t1}, v{t2}')
    a(f'v_add_u32 v{t1}, s22, v{t1}')
    a('s_waitcnt lgkmcnt(0)')
    for r in range(2):
        AOP = ROW[r] + 8
        for kk in range(2):
            for i in range(2):
                d = AOP + kk*4 + i*2
                a(f'ds_read_b64_tr_b16 v[{d}:{d+1}], v{t1} offset:{XN_LDS + r*2048 + kk*1024 + i*256}')
    a('s_waitcnt lgkmcnt(0)')
    for kk in range(2):
        for r in range(2):
            B = ROW[r]
            mf(a, B+16, B+8+4*kk, CB[kk], first=(kk == 0))
            mf(a, B+32, B+8+4*kk, NB[kk], first=(kk == 0))
    a('s_nop 7'); a('s_nop 7')
    for r in range(2):
        B = ROW[r]
        twiddle_apply(a, B+16, B+32, TC, TS, B+48, B+64, B, B+8)
    a('s_nop 1')
    for kk in range(2):
        for r in range(2):
            B = ROW[r]; mf(a, B+16, A1[kk], B+4*kk, first=(kk == 0))
        for r in range(2):
            B = ROW[r]; mf(a, B+16, A2[kk], B+8+4*kk)
    a(f'v_and_b32 v{t0}, 31, v{vL}'); a(f'v_lshlrev_b32 v{t0}, 3, v{t0}')
    a(f'v_lshrrev_b32 v{t1}, 5, v{vL}'); a(f'v_lshlrev_b32 v{t1}, 8, v{t1}'); a(f'v_add_u32 v{t0}, v{t0}, v{t1}')
    a(f's_mul_i32 s22, s{sW}, {2*SROW}'); a(f'v_add_u32 v{t0}, s22, v{t0}')
    a(f'v_cmp_eq_u32 vcc, 0, v{vL}')
    a('s_nop 7'); a('s_nop 7')
    for r in range(2):
        B = ROW[r]; D = B + 16; P = B + 32
        for q in range(4):
            a(f'v_cvt_pk_bf16_f32 v{P+2*q}, v{D+4*q}, v{D+4*q+1}')
            a(f'v_cvt_pk_bf16_f32 v{P+2*q+1}, v{D+4*q+2}, v{D+4*q+3}')
        a(f'v_cndmask_b32 v{P}, v{P}, v{vNY[r]}, vcc')
        for q in range(4):
            a(f'ds_write_b64 v{t0}, v[{P+2*q}:{P+2*q+1}] offset:{S_LDS + r*SROW + q*512}')
    a(f'v_bfe_u32 v{t1}, v{vL}, 2, 2'); a(f's_mov_b32 s22, {SROW}'); a(f'v_mul_lo_u32 v{t1}, v{t1}, s22')
    a(f'v_lshrrev_b32 v{t2}, 4, v{vL}'); a(f'v_lshlrev_b32 v{t2}, 5, v{t2}'); a(f'v_add_u32 v{t1}, v{t1}, v{t2}')
    a(f'v_and_b32 v{t2}, 3, v{vL}'); a(f'v_lshlrev_b32 v{t2}, 3, v{t2}'); a(f'v_add_u32 v{t1}, v{t1}, v{t2}')
    a(f's_lshl_b32 s22, s{sW}, 9'); a(f'v_add_u32 v{t1}, s22, v{t1}')
    a(f'v_lshrrev_b32 v{t2}, 2, v{vL}'); a(f'v_lshlrev_b32 v{t2}, 14, v{t2}')
    a('s_bfe_u32 s22, s2, 0x20002')
    a(f'v_and_b32 v{t0}, 3, v{vL}'); a(f'v_xor_b32 v{t0}, s22, v{t0}'); a(f'v_lshlrev_b32 v{t0}, 4, v{t0}')
    a(f'v_add_u32 v{t2}, v{t2}, v{t0}')
    a('s_lshl_b32 s22, s2, 6'); a(f's_lshl_b32 s23, s{sW}, 20'); a('s_add_u32 s22, s22, s23')
    a('s_waitcnt lgkmcnt(0)')
    DG.mark()
    a('s_barrier')
    O = 80
    for n in range(4):
        for i in range(2):
            d = O + n*4 + i*2
            a(f'ds_read_b64_tr_b16 v[{d}:{d+1}], v{t1} offset:{S_LDS + i*4*SROW + n*128}')
    for n in range(4):
        a(f's_waitcnt lgkmcnt({6 - 2*n})')
        a(f's_add_u32 s23, s22, {n*16*16384}')
        a(f'buffer_store_dwordx4 v[{O+n*4}:{O+n*4+3}], v{t2}, s[{S_XD}:{S_XD+3}], s23 offen' + stf())
    DG.mark()
    DG.dump(6, sW, vt=100)
    a('s_endpgm')

def wprep(a, base):
    a.clear_prot()
    S_R, S_I, S_WT, sW, sU = 8, 12, 16, 20, 21
    vL = 1
    RSZ = 33*1024
    a(f"s_load_dwordx4 s[4:7], s[0:1], {KA['wr']}")
    a(f"s_load_dwordx2 s[22:23], s[0:1], {KA['ws']}")
    a(f'v_and_b32 v{vL}, 63, v0'); a('v_lshrrev_b32 v2, 6, v0'); a('s_nop 0')
    a(f'v_readfirstlane_b32 s{sW}, v2')
    a(f's_sub_u32 s{sU}, s2, {base}')
    a(f'v_lshlrev_b32 v2, 4, v{vL}')
    a('s_waitcnt lgkmcnt(0)')
    srd(a, S_R, 4, 2048*1026); srd(a, S_I, 6, 2048*1026)
    srd_ws(a, S_WT, 22, WS_WT, 4*MB)
    a(f's_mul_i32 s24, s{sU}, {32*1026}')
    for arr, S in ((0, S_R), (1, S_I)):
        for n in range(9):
            lbl = f'L_wp_skip{arr}_{n}'
            if n == 8:
                a(f's_cmp_lg_u32 s{sW}, 0'); a(f's_cbranch_scc1 {lbl}')
            a(f's_lshl_b32 s25, s{sW}, 10'); a(f's_add_u32 s25, s25, {n*4096}')
            a(f's_add_u32 m0, s25, {arr*RSZ}')
            a('s_add_u32 s25, s25, s24')
            a(f'buffer_load_dwordx4 v2, s[{S}:{S+3}], s25 offen lds')
            if n == 8: a(f'{lbl}:')
    a(f'v_and_b32 v3, 31, v{vL}'); a('s_movk_i32 s25, 1026'); a('v_mul_lo_u32 v3, v3, s25')
    a(f'v_lshrrev_b32 v4, 5, v{vL}'); a('v_lshlrev_b32 v5, 6, v4'); a('v_add_u32 v3, v3, v5')
    a(f'v_lshlrev_b32 v6, 13, v4'); a(f'v_and_b32 v5, 31, v{vL}'); a('v_lshlrev_b32 v5, 2, v5'); a('v_add_u32 v6, v6, v5')
    a(f's_and_b32 s25, s{sU}, 1'); a('s_lshl_b32 s25, s25, 12')
    a(f's_lshr_b32 s26, s{sU}, 4'); a('s_lshl_b32 s26, s26, 10'); a('s_add_u32 s25, s25, s26')
    a(f's_bfe_u32 s26, s{sU}, 0x20001'); a('s_lshl_b32 s26, s26, 8'); a('s_add_u32 s25, s25, s26')
    a(f's_bfe_u32 s26, s{sU}, 0x10003'); a('s_lshl_b32 s26, s26, 7'); a('s_add_u32 s25, s25, s26')
    a(f's_lshl_b32 s26, s{sW}, 20'); a('s_add_u32 s25, s25, s26')
    a(f's_lshl_b32 s26, s{sW}, 8'); a('v_add_u32 v3, s26, v3')
    a('v_mov_b32 v7, v3')
    a(f'v_cmp_gt_u32 vcc, 32, v{vL}')
    a(f's_cmp_eq_u32 s{sW}, 0'); a('s_cselect_b64 s[26:27], vcc, 0')
    a('v_add_u32 v8, 1024, v3')
    a('v_cndmask_b32 v7, v3, v8, s[26:27]')
    a('s_waitcnt vmcnt(0)')
    a('s_barrier')
    for i0 in range(0, 64, 8):
        for i in range(i0, i0+8):
            off = (i & 31)*2 + (i >> 5)*128
            src = 7 if i == 0 else 3
            a(f'ds_read_u16 v{10+(i&7)}, v{src} offset:{off}')
            a(f'ds_read_u16_d16_hi v{20+(i&7)}, v{src} offset:{off + RSZ}')
        for i in range(i0, i0+8):
            a(f's_waitcnt lgkmcnt({min(15, 14 - 2*(i-i0))})')
            a(f'v_or_b32 v{30+(i&7)}, v{10+(i&7)}, v{20+(i&7)}')
            a(f's_add_u32 s26, s25, {i*16384}')
            a(f'buffer_store_dword v{30+(i&7)}, v6, s[{S_WT}:{S_WT+3}], s26 offen' + stf())
        a('s_nop 0')
    a('s_endpgm')


def p2(a, diag=False):
    a.clear_prot()
    DG = Diag(a, diag, 1)
    DG.start()
    S_XD, S_WT, S_YD, sW = 8, 12, 16, 20
    vL, t0, t1, t2, vK, vH, vB0, vSG = 1, 2, 3, 4, 5, 6, 7, 8
    C64 = [10+4*n for n in range(4)]; S64 = [26+4*n for n in range(4)]; N64 = [42+4*n for n in range(4)]
    C32 = [58, 62]; S32 = [66, 70]; N32 = [74, 78]
    TCf, TSf, TCi, TSi = 82, 98, 114, 130
    WV = 146
    AR = [162+4*n for n in range(4)]; AI = [178+4*n for n in range(4)]
    DR, DI = 194, 210
    TR, TI = 162, 178
    PR, PI = 226, 234
    QR, QI = 242, 162
    XL, EX = 0, 16384
    a(f"s_load_dwordx2 s[6:7], s[0:1], {KA['ws']}")
    a(f'v_and_b32 v{vL}, 63, v0'); a(f'v_lshrrev_b32 v{t0}, 6, v0'); a('s_nop 0')
    a(f'v_readfirstlane_b32 s{sW}, v{t0}')
    a(f'v_lshlrev_b32 v{t0}, 4, v{vL}')
    a(f'v_lshlrev_b32 v{t1}, 2, v{vL}')
    a(f's_and_b32 s21, s{sW}, 1')
    a(f's_lshr_b32 s22, s{sW}, 1')
    a('s_waitcnt lgkmcnt(0)')
    srd_ws(a, S_XD, 6, WS_XD, 4*MB); srd_ws(a, S_WT, 6, WS_WT, 4*MB); srd_ws(a, S_YD, 6, WS_YD, 4*MB)
    a(f's_lshl_b32 s23, s{sW}, 12'); a('s_mov_b32 m0, s23')
    a('s_lshl_b32 s24, s2, 14'); a('s_add_u32 s24, s24, s23')
    for n in range(4):
        a(f'buffer_load_dwordx4 v{t0}, s[{S_XD}:{S_XD+3}], s24 offen offset:{n*1024} lds')
    for rho in range(16):
        a(f'buffer_load_dword v{WV+rho}, v{t1}, s[{S_WT}:{S_WT+3}], s24 offen offset:{rho*256}')
    if OPT['pf']: code_prefetch(a, 'k3_kernel', 'L_k3_end', 250, 253, 40, vL)
    lane_floats(a, vL, vK, vH, t2)
    a('s_lshl_b32 s25, s21, 5'); a(f'v_cvt_f32_u32 v{t2}, s25')
    a(f'v_add_f32 v{vB0}, v{vK}, v{t2}')
    vX = 9
    a(f'v_mov_b32 v{vX}, v{vB0}')
    a(f'v_mul_f32 v{t2}, {fconst(1/64)}, v{vX}')
    a(f'v_mul_f32 v{vB0}, 4.0, v{vH}')
    a(f's_lshl_b32 s25, s21, 5'); a(f'v_cvt_f32_u32 v{t0}, s25'); a(f'v_add_f32 v{vB0}, v{vB0}, v{t0}')
    a(f'v_mul_f32 v{vB0}, v{vB0}, v{t2}')
    for n in range(2):
        offs = [16*n + o for o in OFF_I]
        lin_cos(a, [C64[n]+i for i in range(4)], offs, t2, vB0, 0.0, t0, t1)
        lin_cos(a, [S64[n]+i for i in range(4)], offs, t2, vB0, -0.25, t0, t1)
    sign_mask(a, vSG, vL, 0)
    for n in range(2):
        for i in range(4):
            a(f'v_xor_b32 v{C64[n+2]+i}, v{vSG}, v{C64[n]+i}'); a(f'v_xor_b32 v{S64[n+2]+i}, v{vSG}, v{S64[n]+i}')
    for n in range(4):
        for i in range(4): a(f'v_xor_b32 v{N64[n]+i}, 0x80008000, v{S64[n]+i}')
    a(f'v_mul_f32 v{t2}, {fconst(1/32)}, v{vK}')
    a(f'v_mul_f32 v{vB0}, 4.0, v{vH}'); a(f'v_mul_f32 v{vB0}, v{vB0}, v{t2}')
    lin_cos(a, [C32[0]+i for i in range(4)], OFF_I, t2, vB0, 0.0, t0, t1)
    lin_cos(a, [S32[0]+i for i in range(4)], OFF_I, t2, vB0, -0.25, t0, t1)
    for i in range(4):
        a(f'v_xor_b32 v{C32[1]+i}, v{vSG}, v{C32[0]+i}'); a(f'v_xor_b32 v{S32[1]+i}, v{vSG}, v{S32[0]+i}')
    for n in range(2):
        for i in range(4): a(f'v_xor_b32 v{N32[n]+i}, 0x80008000, v{S32[n]+i}')
    a(f'v_mul_f32 v{t2}, {fconst(1/2048)}, v{vX}')
    a(f'v_mul_f32 v{vB0}, 4.0, v{vH}'); a(f'v_mul_f32 v{vB0}, v{vB0}, v{t2}')
    twiddle_tab(a, TCf, TSf, OFF_R, t2, vB0, t0, neg=True, scale=2.0**-20)
    a(f'v_mul_f32 v{t2}, {fconst(1/2048)}, v{vK}')
    a(f'v_mul_f32 v{vB0}, 4.0, v{vH}')
    a(f's_lshl_b32 s25, s21, 5'); a(f'v_cvt_f32_u32 v{t0}, s25'); a(f'v_add_f32 v{vB0}, v{vB0}, v{t0}')
    a(f'v_mul_f32 v{vB0}, v{vB0}, v{t2}')
    twiddle_tab(a, TCi, TSi, OFF_R, t2, vB0, t0, neg=False)
    vA = [[2, 3], [4, 5]]
    a(f'v_bfe_u32 v{vB0}, v{vL}, 2, 2')
    a('s_lshl_b32 s25, s22, 1')
    a(f'v_xor_b32 v{vB0}, s25, v{vB0}')
    a(f'v_lshlrev_b32 v{vSG}, 6, v{vL}')
    for ri in range(2):
        a(f'v_xor_b32 v{vX}, {ri}, v{vB0}'); a(f'v_lshlrev_b32 v{vX}, 4, v{vX}'); a(f'v_add_u32 v{vX}, v{vX}, v{vSG}')
        a('s_lshl_b32 s25, s21, 13'); a(f'v_add_u32 v{vA[ri][0]}, s25, v{vX}')
        a('s_xor_b32 s25, s25, 8192'); a(f'v_add_u32 v{vA[ri][1]}, s25, v{vX}')
    DG.mark()
    a('s_waitcnt vmcnt(16)')
    a('s_barrier')
    DG.mark()
    for n in range(4):
        a(f'ds_read_b128 v[{AR[n]}:{AR[n]+3}], v{vA[0][n>>1]} offset:{XL + (n&1)*4096}')
        a(f'ds_read_b128 v[{AI[n]}:{AI[n]+3}], v{vA[1][n>>1]} offset:{XL + (n&1)*4096}')
    for n in range(4):
        a(f's_waitcnt lgkmcnt({6 - 2*n})')
        mf(a, DR, AR[n], C64[n], first=(n == 0)); mf(a, DI, AI[n], C64[n], first=(n == 0))
        mf(a, DR, AI[n], S64[n]); mf(a, DI, AR[n], N64[n])
    a('s_nop 7'); a('s_nop 7')
    twiddle_apply(a, DR, DI, TCf, TSf, TR, TI, PR, PI)
    a('s_nop 1')
    for kk in range(2):
        mf(a, DR, C32[kk], PR+4*kk, first=(kk == 0)); mf(a, DI, C32[kk], PI+4*kk, first=(kk == 0))
        mf(a, DR, S32[kk], PI+4*kk); mf(a, DI, N32[kk], PR+4*kk)
    a('s_waitcnt vmcnt(0)')
    for rho in range(16):
        a(f'v_lshlrev_b32 v{TR+rho}, 16, v{WV+rho}'); a(f'v_and_b32 v{TI+rho}, 0xffff0000, v{WV+rho}')
    twiddle_apply(a, DR, DI, TR, TI, TCf, TSf, PR, PI)
    a('s_nop 1')
    for kk in range(2):
        mf(a, DR, PR+4*kk, C32[kk], first=(kk == 0)); mf(a, DI, PI+4*kk, C32[kk], first=(kk == 0))
        mf(a, DR, PI+4*kk, N32[kk]); mf(a, DI, PR+4*kk, S32[kk])
    a(f'v_lshlrev_b32 v{t0}, 4, v{vL}')
    a(f's_lshl_b32 s25, s{sW}, 12'); a(f'v_add_u32 v{t1}, s25, v{t0}')
    a('s_xor_b32 s25, s25, 4096'); a(f'v_add_u32 v{t2}, s25, v{t0}')
    a('s_nop 7'); a('s_nop 5')
    twiddle_apply(a, DR, DI, TCi, TSi, TR, TI, PR, PI)
    for n in range(2):
        a(f'ds_write_b128 v{t1}, v[{PR+4*n}:{PR+4*n+3}] offset:{EX + n*1024}')
        a(f'ds_write_b128 v{t1}, v[{PI+4*n}:{PI+4*n+3}] offset:{EX + 2048 + n*1024}')
    a('s_waitcnt lgkmcnt(0)')
    a('s_barrier')
    for n in range(2):
        a(f'ds_read_b128 v[{QR+4*n}:{QR+4*n+3}], v{t2} offset:{EX + n*1024}')
        a(f'ds_read_b128 v[{QI+4*n}:{QI+4*n+3}], v{t2} offset:{EX + 2048 + n*1024}')
    for n in range(2):
        mf(a, DR, C64[n], PR+4*n, first=(n == 0)); mf(a, DI, S64[n], PR+4*n, first=(n == 0))
        mf(a, DR, N64[n], PI+4*n); mf(a, DI, C64[n], PI+4*n)
    a('s_waitcnt lgkmcnt(0)')
    for n in range(2):
        mf(a, DR, C64[2+n], QR+4*n); mf(a, DI, S64[2+n], QR+4*n)
        mf(a, DR, N64[2+n], QI+4*n); mf(a, DI, C64[2+n], QI+4*n)
    a('s_bfe_u32 s25, s2, 0x30002')
    a(f'v_and_b32 v{t0}, 31, v{vL}'); a(f'v_xor_b32 v{t0}, s25, v{t0}'); a(f'v_lshlrev_b32 v{t0}, 3, v{t0}')
    a(f'v_lshrrev_b32 v{t1}, 5, v{vL}'); a(f'v_lshlrev_b32 v{t1}, 10, v{t1}'); a(f'v_add_u32 v{t0}, v{t0}, v{t1}')
    a('s_lshl_b32 s25, s21, 13'); a('s_lshl_b32 s26, s22, 2'); a('s_add_u32 s25, s25, s26')
    a(f'v_add_u32 v{t0}, s25, v{t0}')
    a(f'v_lshlrev_b32 v{t1}, 4, v{vL}'); a(f's_lshl_b32 s25, s{sW}, 12'); a(f'v_add_u32 v{t1}, s25, v{t1}')
    a(f'v_lshrrev_b32 v{t2}, 2, v{vL}'); a(f'v_lshlrev_b32 v{t2}, 14, v{t2}')
    a(f'v_and_b32 v{vB0}, 3, v{vL}'); a(f'v_lshlrev_b32 v{vB0}, 4, v{vB0}'); a(f'v_add_u32 v{t2}, v{t2}, v{vB0}')
    a('s_lshl_b32 s25, s2, 6'); a(f's_lshl_b32 s26, s{sW}, 20'); a('s_add_u32 s25, s25, s26')
    a('s_nop 7'); a('s_nop 3')
    for rho in range(16):
        a(f'v_cvt_pk_bf16_f32 v{TR+rho}, v{DR+rho}, v{DI+rho}')
    for rho in range(16):
        a(f'ds_write_b32 v{t0}, v{TR+rho} offset:{XL + OFF_R[rho]*256}')
    a('s_waitcnt lgkmcnt(0)')
    DG.mark()
    a('s_barrier')
    for n in range(4):
        a(f'ds_read_b128 v[{DR+4*n}:{DR+4*n+3}], v{t1} offset:{XL + n*1024}')
    for n in range(4):
        a(f's_waitcnt lgkmcnt({3-n})')
        a(f's_add_u32 s26, s25, {n*16*16384}')
        a(f'buffer_store_dwordx4 v[{DR+4*n}:{DR+4*n+3}], v{t2}, s[{S_YD}:{S_YD+3}], s26 offen' + stf())
    DG.mark()
    DG.dump(6, sW, vt=100)
    a('s_endpgm')

def p3(a, diag=False):
    a.clear_prot()
    DG = Diag(a, diag, 2)
    DG.start()
    S_X, S_YD, S_H, S_HN, sW = 8, 12, 16, 20, 24
    vL, t0, t1, t2, vK, vH, vB0, vSG, vBf, vNS = 1, 2, 3, 4, 5, 6, 7, 8, 9, 74
    B1 = [10, 14]; B2 = [18, 22]; CB = [26, 30]; NB = [34, 38]; TC, TS = 42, 58
    vXA = 75
    ROW = [80, 160]
    a(f"s_load_dwordx2 s[4:5], s[0:1], {KA['x']}")
    a(f"s_load_dwordx2 s[6:7], s[0:1], {KA['ws']}")
    a(f'v_and_b32 v{vL}, 63, v0'); a(f'v_lshrrev_b32 v{t0}, 6, v0'); a('s_nop 0')
    a(f'v_readfirstlane_b32 s{sW}, v{t0}')
    a(f'v_lshlrev_b32 v{t0}, 4, v{vL}')
    a(f'v_and_b32 v{vXA}, 31, v{vL}'); a(f'v_lshlrev_b32 v{vXA}, 6, v{vXA}')
    a(f'v_lshrrev_b32 v{t1}, 5, v{vL}'); a(f'v_lshlrev_b32 v{t1}, 5, v{t1}'); a(f'v_add_u32 v{vXA}, v{vXA}, v{t1}')
    a(f's_lshl_b32 s25, s2, 3'); a(f's_lshl_b32 s26, s{sW}, 1'); a('s_add_u32 s25, s25, s26'); a('s_lshl_b32 s28, s25, 11')
    a('s_add_u32 s29, s28, 2048')
    a('s_waitcnt lgkmcnt(0)')
    srd(a, S_X, 4, 2048*2048)
    srd_ws(a, S_YD, 6, WS_YD, 4*MB); srd_ws(a, S_H, 6, WS_H, 4*MB); srd_ws(a, S_HN, 6, WS_HN, 4*MB)
    a(f's_lshl_b32 s26, s{sW}, 12'); a('s_mov_b32 m0, s26')
    a('s_lshl_b32 s27, s2, 14'); a('s_add_u32 s27, s27, s26')
    for n in range(4):
        a(f'buffer_load_dwordx4 v{t0}, s[{S_YD}:{S_YD+3}], s27 offen offset:{n*1024} lds')
    for r in range(2):
        B = ROW[r]
        a(f'buffer_load_dwordx4 v[{B}:{B+3}], v{vXA}, s[{S_X}:{S_X+3}], s{28+r} offen')
        a(f'buffer_load_dwordx4 v[{B+4}:{B+7}], v{vXA}, s[{S_X}:{S_X+3}], s{28+r} offen offset:16')
    if OPT['pf']: code_prefetch(a, 'k4_kernel', 'L_g1_end', 250, 253, 40, vL, wave_off=(sW, 42))
    lane_floats(a, vL, vK, vH, t2)
    a(f'v_bfe_u32 v{t0}, v{vL}, 2, 1'); a(f'v_lshlrev_b32 v{t0}, 4, v{t0}')
    a(f'v_bfe_u32 v{t1}, v{vL}, 3, 2'); a(f'v_lshlrev_b32 v{t1}, 2, v{t1}'); a(f'v_add_u32 v{t0}, v{t0}, v{t1}')
    a(f'v_and_b32 v{t1}, 3, v{vL}'); a(f'v_add_u32 v{t0}, v{t0}, v{t1}'); a(f'v_cvt_f32_u32 v{vBf}, v{t0}')
    a(f'v_mul_f32 v{t2}, {fconst(1/32)}, v{vBf}')
    a(f'v_mul_f32 v{vB0}, 4.0, v{vH}'); a(f'v_mul_f32 v{vB0}, v{vB0}, v{t2}')
    for kk in range(2):
        for dst, add in ((B1, 0.0), (B2, -0.25)):
            for i in range(4):
                k2 = 8*kk + i
                a(f'v_mov_b32 v{t0}, {fconst(float(k2))}'); a(f'v_fma_f32 v{t0}, v{t0}, v{t2}, v{vB0}')
                if add: a(f'v_add_f32 v{t0}, {fconst(add)}, v{t0}')
                a(f'v_add_f32 v{t1}, {fconst(0.25)}, v{t0}')
                a(f'v_cos_f32 v{t0}, v{t0}'); a(f'v_cos_f32 v{t1}, v{t1}'); a('s_nop 0')
                a(f'v_cvt_pk_bf16_f32 v{dst[kk]+i}, v{t0}, v{t1}')
    a(f'v_mul_f32 v{t2}, {fconst(1/32)}, v{vK}')
    a(f'v_mul_f32 v{vB0}, 4.0, v{vH}'); a(f'v_mul_f32 v{vB0}, v{vB0}, v{t2}')
    lin_cos(a, [CB[0]+i for i in range(4)], OFF_I, t2, vB0, 0.0, t0, t1)
    lin_cos(a, [NB[0]+i for i in range(4)], OFF_I, t2, vB0, 0.25, t0, t1)
    sign_mask(a, vSG, vL, 0)
    for i in range(4):
        a(f'v_xor_b32 v{CB[1]+i}, v{vSG}, v{CB[0]+i}'); a(f'v_xor_b32 v{NB[1]+i}, v{vSG}, v{NB[0]+i}')
    a(f'v_mul_f32 v{t2}, {fconst(1/1024)}, v{vBf}')
    a(f'v_mul_f32 v{vB0}, 4.0, v{vH}'); a(f'v_mul_f32 v{vB0}, v{vB0}, v{t2}')
    twiddle_tab(a, TC, TS, OFF_R, t2, vB0, t0, neg=False)
    a(f'v_and_b32 v{t0}, 1, v{vL}'); a(f'v_cvt_f32_u32 v{t0}, v{t0}'); a(f'v_sub_f32 v{t0}, 0.5, v{t0}')
    a(f'v_cmp_gt_u32 vcc, 32, v{vL}'); a('s_nop 1'); a(f'v_cndmask_b32 v{vNS}, 0, v{t0}, vcc')
    a(f'v_bfe_u32 v{t0}, v{vL}, 2, 3')
    a(f's_lshl_b32 s26, s{sW}, 1')
    a(f'v_and_b32 v{t1}, 31, v{vL}'); a(f'v_lshlrev_b32 v{t1}, 6, v{t1}')
    a(f'v_lshrrev_b32 v{t2}, 5, v{vL}'); a(f'v_lshlrev_b32 v{t2}, 12, v{t2}'); a(f'v_add_u32 v{t1}, v{t1}, v{t2}')
    vAd = [2, 3]
    a(f'v_xor_b32 v{vB0}, s26, v{t0}')
    a(f'v_xor_b32 v{vSG}, 1, v{vB0}')
    a(f'v_lshlrev_b32 v{vB0}, 3, v{vB0}'); a(f'v_lshlrev_b32 v{vSG}, 3, v{vSG}')
    a(f'v_add_u32 v{vAd[0]}, v{t1}, v{vB0}'); a(f'v_add_u32 v{vAd[1]}, v{t1}, v{vSG}')
    DG.mark()
    a('s_waitcnt vmcnt(4)')
    a('s_barrier')
    DG.mark()
    for r in range(2):
        AOP = ROW[r] + 8
        for kk in range(2):
            for jj in range(2):
                d = AOP + 4*kk + 2*jj
                a(f'ds_read_b64 v[{d}:{d+1}], v{vAd[r]} offset:{kk*8192 + jj*2048}')
    a('s_waitcnt lgkmcnt(0)')
    for r in range(2):
        AOP = ROW[r] + 8
        a(f'v_readlane_b32 s{30+r}, v{AOP}, 0')
    a('s_nop 0')
    for r in range(2):
        AOP = ROW[r] + 8
        a(f's_and_b32 s{30+r}, s{30+r}, 0xffff0000')
        a(f'v_writelane_b32 v{AOP}, 0, 0')
    a('s_nop 1')
    for kk in range(2):
        for r in range(2):
            B = ROW[r]
            mf(a, B+16, B+8+4*kk, B1[kk], first=(kk == 0)); mf(a, B+32, B+8+4*kk, B2[kk], first=(kk == 0))
    a('s_nop 7'); a('s_nop 7')
    for r in range(2):
        B = ROW[r]
        a(f'v_fmac_f32 v{B+16}, s{30+r}, v{vNS}')
    for r in range(2):
        B = ROW[r]
        twiddle_apply(a, B+16, B+32, TC, TS, B+48, B+64, B+8, B+32+8)
    a('s_nop 1')
    for kk in range(2):
        for r in range(2):
            B = ROW[r]; mf(a, B+16, B+8+4*kk, CB[kk], first=(kk == 0))
        for r in range(2):
            B = ROW[r]; mf(a, B+16, B+40+4*kk, NB[kk])
    a('s_waitcnt vmcnt(0)')
    for r in range(2): unpack16(a, ROW[r]+48, ROW[r])
    a('s_nop 7'); a('s_nop 3')
    for r in range(2):
        B = ROW[r]; D = B + 16; X = B + 48; P = B + 32
        for i in range(8):
            a(f'v_cvt_pk_bf16_f32 v{P+i}, v{D+2*i}, v{D+2*i+1}')
        unpack16(a, D, P)
        for i in range(16): a(f'v_add_f32 v{D+i}, v{D+i}, v{X+i}')
        for i in range(8):
            a(f'v_cvt_pk_bf16_f32 v{B+i}, v{D+2*i}, v{D+2*i+1}')
        a(f'buffer_store_dwordx4 v[{B}:{B+3}], v{vXA}, s[{S_H}:{S_H+3}], s{28+r} offen' + stf())
        a(f'buffer_store_dwordx4 v[{B+4}:{B+7}], v{vXA}, s[{S_H}:{S_H+3}], s{28+r} offen offset:16' + stf())
        unpack16(a, D, B)
    DG.mark()
    F = [ROW[r] + 16 for r in range(2)]; T = [ROW[r] + 48 for r in range(2)]; OP = [ROW[r] + 64 for r in range(2)]
    layernorm2(a, F, T, 32, OP)
    for r in range(2):
        a(f'buffer_store_dwordx4 v[{OP[r]}:{OP[r]+3}], v{vXA}, s[{S_HN}:{S_HN+3}], s{28+r} offen' + stf())
        a(f'buffer_store_dwordx4 v[{OP[r]+4}:{OP[r]+7}], v{vXA}, s[{S_HN}:{S_HN+3}], s{28+r} offen offset:16' + stf())
    DG.mark()
    DG.dump(6, sW, vt=100)
    a('s_endpgm')


def pack_win(a, base):
    a.clear_prot()
    S_W, S_O, sW, sU = 8, 12, 20, 21
    vL = 1
    a(f"s_load_dwordx2 s[4:5], s[0:1], {KA['win']}")
    a(f"s_load_dwordx2 s[6:7], s[0:1], {KA['ws']}")
    a(f'v_and_b32 v{vL}, 63, v0'); a('v_lshrrev_b32 v2, 6, v0'); a('s_nop 0')
    a(f'v_readfirstlane_b32 s{sW}, v2')
    a(f's_sub_u32 s{sU}, s2, {base}')
    a(f's_mul_i32 s22, s{sW}, 448'); a(f'v_add_u32 v2, s22, v{vL}')
    a('s_movk_i32 s23, 9363'); a('s_movk_i32 s24, 7168')
    for m in range(7):
        a(f'v_add_u32 v3, {64*m}, v2')
        a('v_mul_lo_u32 v4, v3, s23'); a('v_lshrrev_b32 v4, 19, v4')
        a('v_mul_u32_u24 v5, 56, v4'); a('v_sub_u32 v5, v3, v5')
        a('v_mul_lo_u32 v4, v4, s24'); a('v_lshlrev_b32 v5, 4, v5'); a(f'v_add_u32 v{10+m}, v4, v5')
    a(f's_lshr_b32 s22, s{sU}, 3'); a(f's_mul_i32 s22, s22, {32*7168}')
    a(f's_and_b32 s23, s{sU}, 7'); a('s_mul_i32 s23, s23, 896'); a('s_add_u32 s22, s22, s23')
    a(f's_mul_i32 s23, s{sW}, {7*1024}')
    a('s_waitcnt lgkmcnt(0)')
    srd(a, S_W, 4, SZ_WINP); srd_ws(a, S_O, 6, WS_WINP, SZ_WINP)
    for m in range(7):
        a(f's_add_u32 m0, s23, {m*1024}'); a('s_nop 0')
        a(f'buffer_load_dwordx4 v{10+m}, s[{S_W}:{S_W+3}], s22 offen lds')
    a(f'v_lshrrev_b32 v2, 4, v{vL}'); a('v_lshlrev_b32 v2, 3, v2'); a(f'v_bfe_u32 v3, v{vL}, 2, 2'); a('v_add_u32 v2, v2, v3')
    a('s_movk_i32 s24, 896'); a('v_mul_lo_u32 v2, v2, s24')
    a(f'v_and_b32 v3, 3, v{vL}'); a('v_lshlrev_b32 v3, 3, v3'); a('v_add_u32 v2, v2, v3')
    a(f's_mul_i32 s24, s{sW}, 224'); a('v_add_u32 v2, s24, v2')
    a(f's_and_b32 s23, s{sU}, 7'); a('s_lshl_b32 s23, s23, 2'); a(f's_add_u32 s23, s23, s{sW}'); a('s_lshl_b32 s23, s23, 5')
    a(f's_lshr_b32 s24, s{sU}, 3'); a('s_add_u32 s23, s23, s24'); a('s_mul_i32 s23, s23, 7168')
    a(f'v_lshlrev_b32 v3, 4, v{vL}')
    a('s_waitcnt vmcnt(0)')
    a('s_barrier')
    for u in range(7):
        for i in range(2):
            d = 20 + u*4 + i*2
            a(f'ds_read_b64_tr_b16 v[{d}:{d+1}], v2 offset:{i*4*896 + u*32}')
    for u in range(7):
        a(f's_waitcnt lgkmcnt({12 - 2*u})')
        a(f's_add_u32 s24, s23, {u*1024}')
        a(f'buffer_store_dwordx4 v[{20+u*4}:{23+u*4}], v3, s[{S_O}:{S_O+3}], s24 offen' + stf())
    a('s_endpgm')

def pack_wout_touch(a, base):
    a.clear_prot()
    S_W, S_O, S_P, S_S, sW, sU = 8, 12, 16, 32, 20, 21
    vL = 1
    a(f"s_load_dwordx2 s[4:5], s[0:1], {KA['wout']}")
    a(f"s_load_dwordx2 s[6:7], s[0:1], {KA['ws']}")
    a(f"s_load_dwordx2 s[28:29], s[0:1], {KA['wsp']}")
    a(f'v_and_b32 v{vL}, 63, v0'); a('v_lshrrev_b32 v2, 6, v0'); a('s_nop 0')
    a(f'v_readfirstlane_b32 s{sW}, v2')
    a(f's_sub_u32 s{sU}, s2, {base}')
    a(f'v_lshlrev_b32 v6, 4, v{vL}')
    a('s_waitcnt lgkmcnt(0)')
    srd(a, S_W, 4, SZ_WOUTP); srd_ws(a, S_O, 6, WS_WOUTP, SZ_WOUTP)
    srd(a, S_P, 28, 2048*4096); srd_ws(a, S_S, 6, WS_ST, 16*16*128*8)
    a(f's_cmp_ge_u32 s{sU}, 224'); a('s_cbranch_scc1 L_pw_touch')
    a(f'v_lshrrev_b32 v2, 5, v{vL}'); a('v_lshlrev_b32 v2, 11, v2'); a(f'v_and_b32 v3, 31, v{vL}'); a('v_lshlrev_b32 v3, 4, v3'); a('v_add_u32 v2, v2, v3')
    a(f's_lshr_b32 s22, s{sU}, 2'); a('s_lshl_b32 s22, s22, 16')
    a(f's_and_b32 s23, s{sU}, 3'); a('s_lshl_b32 s23, s23, 9'); a('s_add_u32 s22, s22, s23')
    a(f's_lshl_b32 s23, s{sW}, 14'); a('s_add_u32 s22, s22, s23')
    a(f's_lshl_b32 s23, s{sW}, 12')
    for m in range(4):
        a(f's_add_u32 m0, s23, {m*1024}'); a(f's_add_u32 s30, s22, {m*4096}')
        a(f'buffer_load_dwordx4 v2, s[{S_W}:{S_W+3}], s30 offen lds')
    a(f'v_lshrrev_b32 v2, 4, v{vL}'); a('v_lshlrev_b32 v2, 2, v2'); a(f'v_bfe_u32 v3, v{vL}, 2, 2'); a('v_add_u32 v2, v2, v3')
    a('v_lshlrev_b32 v2, 9, v2')
    a(f'v_and_b32 v3, 3, v{vL}'); a('v_lshlrev_b32 v3, 4, v3'); a('v_add_u32 v2, v2, v3')
    a(f's_lshl_b32 s24, s{sW}, 7'); a('v_add_u32 v2, s24, v2')
    a(f's_and_b32 s23, s{sU}, 3'); a('s_lshl_b32 s23, s23, 2'); a(f's_add_u32 s23, s23, s{sW}'); a('s_mul_i32 s23, s23, 56')
    a(f's_lshr_b32 s24, s{sU}, 2'); a('s_add_u32 s23, s23, s24'); a('s_lshl_b32 s23, s23, 12')
    a('s_waitcnt vmcnt(0)')
    a('s_barrier')
    for u in range(4):
        for i in range(2):
            d = 20 + u*4 + i*2
            a(f'ds_read_b64_tr_b16 v[{d}:{d+1}], v2 offset:{i*8192 + (u >> 1)*64 + (u & 1)*8}')
    for u in range(4):
        a(f's_waitcnt lgkmcnt({6 - 2*u})')
        a(f's_add_u32 s24, s23, {u*1024}')
        a(f'buffer_store_dwordx4 v[{20+u*4}:{23+u*4}], v6, s[{S_O}:{S_O+3}], s24 offen' + stf())
    a('L_pw_touch:')
    a(f'v_mov_b32 v40, 0xbf800000'); a('v_mov_b32 v41, v40'); a('v_mov_b32 v42, v40'); a('v_mov_b32 v43, v40')
    a(f's_lshl_b32 s22, s{sU}, 10')
    a(f's_cmp_lg_u32 s{sW}, 0'); a('s_cbranch_scc1 L_pw_nost')
    a(f'buffer_store_dwordx4 v[40:43], v6, s[{S_S}:{S_S+3}], s22 offen')
    a('L_pw_nost:')
    a(f's_lshl_b32 s22, s{sU}, 15'); a(f's_lshl_b32 s23, s{sW}, 13'); a('s_add_u32 s22, s22, s23')
    for n in range(8):
        a(f's_add_u32 s23, s22, {n*1024}')
        a(f'buffer_load_dwordx4 v[{44+4*n}:{47+4*n}], v6, s[{S_P}:{S_P+3}], s23 offen')
    a('s_waitcnt vmcnt(0)')
    a('s_endpgm')

def gen_k2(side=True, diag=False):
    a = Asm()
    a('s_cmp_lt_u32 s2, 256'); a('s_cbranch_scc1 L_k2_p2')
    if side:
        a('s_cmp_lt_u32 s2, 512'); a('s_cbranch_scc1 L_k2_side')
    a('s_endpgm')
    if side:
        a('L_k2_side:'); pack_win(a, 256)
    a('L_k2_p2:')
    p2(a, diag)
    a('L_k2_end:')
    return dict(name='k2_kernel', body=a.text(), grid=512 if side else 256, block=256, lds=32768, vgpr=256, acc=256, sgpr=102)
def gen_k3(side=True, diag=False):
    a = Asm()
    a('s_cmp_lt_u32 s2, 256'); a('s_cbranch_scc1 L_k3_p3')
    if side:
        a('s_cmp_lt_u32 s2, 512'); a('s_cbranch_scc1 L_k3_side')
    a('s_endpgm')
    if side:
        a('L_k3_side:'); pack_wout_touch(a, 256)
    a('L_k3_p3:')
    p3(a, diag)
    a('L_k3_end:')
    return dict(name='k3_kernel', body=a.text(), grid=512 if side else 256, block=256, lds=16384, vgpr=256, acc=256, sgpr=102)

def gen_k1(diag=False):
    a = Asm()
    a('s_cmp_lt_u32 s2, 256'); a('s_cbranch_scc1 L_k1_p1')
    a('s_cmp_lt_u32 s2, 320'); a('s_cbranch_scc1 L_k1_wp')
    a('s_endpgm')
    a('L_k1_wp:')
    wprep(a, 256)
    a('L_k1_p1:')
    p1(a, diag)
    a('L_k1_end:')
    return dict(name='k1_kernel', body=a.text(), grid=320, block=256, lds=2*33*1024+1024, vgpr=256, acc=256, sgpr=102)

if __name__ == '__main__':
    open('k1.s', 'w').write(module([gen_k1()]))
    open('k2.s', 'w').write(module([gen_k2()]))
    open('k3.s', 'w').write(module([gen_k3()]))
```

```python
from gen_common import *

MF16 = 'v_mfma_f32_16x16x32_bf16'
GC0 = -2.0 * 0.7978845608028654 * 1.4426950408889634
GC1 = GC0 * 0.044715
SENT = '0xbf800000'

def gelu_pairs(a, pairs, tmp, sC1, vC0, vOne, round_in=True):
    n = len(pairs)
    T = [tmp + 2*i for i in range(n)]; E = [tmp + 2*n + 2*i for i in range(n)]
    if round_in:
        for i, x in enumerate(pairs): a(f'v_cvt_pk_bf16_f32 v{T[i]}, v{x}, v{x+1}')
        for i, x in enumerate(pairs):
            a(f'v_lshlrev_b32 v{x}, 16, v{T[i]}'); a(f'v_and_b32 v{x+1}, 0xffff0000, v{T[i]}')
    for i, x in enumerate(pairs): a(f'v_pk_mul_f32 v[{T[i]}:{T[i]+1}], v[{x}:{x+1}], v[{x}:{x+1}]')
    for i, x in enumerate(pairs): a(f'v_pk_fma_f32 v[{T[i]}:{T[i]+1}], v[{T[i]}:{T[i]+1}], s[{sC1}:{sC1+1}], v[{vC0}:{vC0+1}]')
    for i, x in enumerate(pairs): a(f'v_pk_mul_f32 v[{T[i]}:{T[i]+1}], v[{T[i]}:{T[i]+1}], v[{x}:{x+1}]')
    for i, x in enumerate(pairs):
        a(f'v_exp_f32 v{E[i]}, v{T[i]}'); a(f'v_exp_f32 v{E[i]+1}, v{T[i]+1}')
    for i, x in enumerate(pairs): a(f'v_pk_add_f32 v[{E[i]}:{E[i]+1}], v[{E[i]}:{E[i]+1}], v[{vOne}:{vOne+1}]')
    for i, x in enumerate(pairs):
        a(f'v_rcp_f32 v{E[i]}, v{E[i]}'); a(f'v_rcp_f32 v{E[i]+1}, v{E[i]+1}')
    if n == 1: a('s_nop 0')
    for i, x in enumerate(pairs): a(f'v_pk_mul_f32 v[{x}:{x+1}], v[{x}:{x+1}], v[{E[i]}:{E[i]+1}]')

def row16_reduce(v):
    return [f'v_add_f32_dpp v{v}, v{v}, v{v} row_ror:8 row_mask:0xf bank_mask:0xf',
            f'v_add_f32_dpp v{v}, v{v}, v{v} row_ror:4 row_mask:0xf bank_mask:0xf',
            f'v_add_f32_dpp v{v}, v{v}, v{v} row_ror:2 row_mask:0xf bank_mask:0xf',
            f'v_add_f32_dpp v{v}, v{v}, v{v} row_ror:1 row_mask:0xf bank_mask:0xf']

def gen_gemm(kind, diag=False, NS=4, prio=0):
    a = Asm()
    P = f'L_g{kind}_'
    NU = 4 if kind == 3 else 7
    NSTEP = 28 if kind == 3 else 32
    FSZ = 2*NU*1024
    SLOT = 16384 + FSZ
    TOK, FEAT = 0, 16384
    S_T, S_F, S_A, S_O, S_B, S_C = 8, 12, 16, 20, 24, 48
    sW, sTB, sFB, sKT, sKF, sM0T, sM0F = 28, 29, 30, 31, 32, 33, 34
    vL = 14
    a('s_cmp_ge_u32 s2, 256')
    a(f's_cbranch_scc1 {P}end')
    a(f"s_load_dwordx2 s[4:5], s[0:1], {KA['ws']}")
    if kind == 2: a(f"s_load_dwordx4 s[44:47], s[0:1], {KA['wsp']}")
    if kind == 3: a(f"s_load_dwordx2 s[44:45], s[0:1], {KA['out']}")
    if diag:
        stamp(a, 40); a('s_memrealtime s[60:61]')
    a(f'v_lshrrev_b32 v1, 6, v0')
    a(f'v_and_b32 v{vL}, 63, v0')
    a(f'v_readfirstlane_b32 s35, v1')
    a('s_and_b32 s3, s2, 7'); a('s_lshr_b32 s36, s2, 3')
    if kind == 1:
        a(f's_and_b32 s{sTB}, s3, 1'); a(f's_lshl_b32 s{sTB}, s{sTB}, 3'); a('s_and_b32 s38, s36, 7'); a(f's_add_u32 s{sTB}, s{sTB}, s38')
        a(f's_lshr_b32 s{sFB}, s3, 1'); a(f's_lshl_b32 s{sFB}, s{sFB}, 2'); a('s_lshr_b32 s38, s36, 3'); a(f's_add_u32 s{sFB}, s{sFB}, s38')
    else:
        a(f's_lshr_b32 s{sTB}, s3, 1'); a(f's_lshl_b32 s{sTB}, s{sTB}, 2'); a('s_and_b32 s38, s36, 3'); a(f's_add_u32 s{sTB}, s{sTB}, s38')
        a(f's_and_b32 s{sFB}, s3, 1'); a(f's_lshl_b32 s{sFB}, s{sFB}, 3'); a('s_lshr_b32 s38, s36, 2'); a(f's_add_u32 s{sFB}, s{sFB}, s38')
    a(f's_and_b32 s{sW}, s35, 3')
    a(f's_cmp_ge_u32 s35, 4')
    a(f's_cbranch_scc0 {P}compute')
    vTD = [2, 3, 4, 5]; vFD = 6
    if kind != 3:
        pitch_sh = 11 if kind == 1 else 12
        a(f'v_lshrrev_b32 v1, 3, v{vL}')
        a(f's_lshl_b32 s38, s{sTB}, 7'); a(f's_lshl_b32 s39, s{sW}, 5'); a('s_add_u32 s38, s38, s39')
        a(f'v_add_u32 v1, s38, v1')
        a(f'v_lshlrev_b32 v1, {pitch_sh}, v1')
        a(f'v_and_b32 v7, 7, v{vL}'); a(f'v_bfe_u32 v15, v{vL}, 4, 1'); a(f'v_xor_b32 v7, v7, v15')
        for m in range(4):
            a(f'v_xor_b32 v15, {m << 1}, v7'); a(f'v_lshlrev_b32 v15, 4, v15'); a(f'v_add_u32 v15, v15, v1')
            a(f'v_add_u32 v{vTD[m]}, {m * 8 * (1 << pitch_sh) - m * 1024}, v15')
        KT_STEP = 128
        a(f's_mov_b32 s{sKT}, 0')
        a(f's_lshl_b32 s38, s{sW}, 2'); a(f's_cmp_eq_u32 s{sW}, 3'); a(f's_cselect_b32 s38, 11, s38')
        a(f's_lshl_b32 s38, s38, 10')
        a(f'v_lshlrev_b32 v{vFD}, 4, v{vL}'); a(f'v_add_u32 v{vFD}, s38, v{vFD}')
        a(f's_add_u32 s{sM0F}, s38, {FEAT}')
        a(f's_cmp_lt_u32 s{sW}, 2'); a(f's_cselect_b64 vcc, -1, 0')
        if kind == 1:
            a(f's_add_u32 s38, s{sFB}, 16'); a(f's_mul_i32 s{sKF}, s38, {32*7*1024}')
            a(f's_mul_i32 s37, s{sFB}, {32*7*1024}')
        else:
            a(f's_mul_i32 s{sKF}, s{sFB}, {64*7*1024}')
        NPER = 7
    else:
        a(f'v_lshlrev_b32 v{vTD[0]}, 4, v{vL}')
        a(f'v_add_u32 v{vTD[1]}, {112*512 - 2048}, v{vTD[0]}')
        a(f's_lshl_b32 s38, s{sTB}, 2'); a(f's_add_u32 s38, s38, s{sW}'); a(f's_mul_i32 s{sKT}, s38, {2*112*512}')
        KT_STEP = 2048
        a(f's_lshl_b32 s38, s{sW}, 11')
        a(f'v_lshlrev_b32 v{vFD}, 4, v{vL}'); a(f'v_add_u32 v{vFD}, s38, v{vFD}')
        a(f's_add_u32 s{sM0F}, s38, {FEAT}')
        a(f's_mul_i32 s{sKF}, s{sFB}, {56*4*1024}')
        NPER = 6
    a(f's_lshl_b32 s{sM0T}, s{sW}, 12')
    a('s_waitcnt lgkmcnt(0)')
    if kind == 1:
        srd_ws(a, S_T, 4, WS_HN, 4*MB); srd_ws(a, S_F, 4, WS_WINP, SZ_WINP)
    elif kind == 2:
        srd(a, S_T, 44, 2048*4096); srd_ws(a, S_F, 4, WS_Z2N, SZ_Z)
    else:
        srd_ws(a, S_T, 4, WS_P, SZ_Z); srd_ws(a, S_F, 4, WS_WOUTP, SZ_WOUTP)
    uid = [0]
    def dma(slot):
        a(f's_add_u32 m0, s{sM0T}, {slot*SLOT + TOK}')
        a(f's_add_u32 s38, s{sM0F}, {slot*SLOT}')
        if kind != 3:
            for m in range(4):
                a(f'buffer_load_dwordx4 v{vTD[m]}, s[{S_T}:{S_T+3}], s{sKT} offen offset:{m*1024} lds')
        else:
            for m in range(4):
                a(f'buffer_load_dwordx4 v{vTD[m>>1]}, s[{S_T}:{S_T+3}], s{sKT} offen offset:{m*1024} lds')
        a('s_mov_b32 m0, s38')
        a(f's_add_u32 s{sKT}, s{sKT}, {KT_STEP}')
        if kind != 3:
            for m in range(3):
                a(f'buffer_load_dwordx4 v{vFD}, s[{S_F}:{S_F+3}], s{sKF} offen offset:{m*1024} lds')
            uid[0] += 1
            lbl = f'{P}skip{uid[0]}'
            a(f's_cbranch_vccz {lbl}')
            a(f'buffer_load_dwordx4 v{vFD}, s[{S_F}:{S_F+3}], s{sKF} offen offset:3072 lds')
            a(f'{lbl}:')
        else:
            for m in range(2):
                a(f'buffer_load_dwordx4 v{vFD}, s[{S_F}:{S_F+3}], s{sKF} offen offset:{m*1024} lds')
        a(f's_add_u32 s{sKF}, s{sKF}, {FSZ}')
    dma(0); dma(1)
    a(f's_waitcnt vmcnt({NPER})')
    a('s_barrier')
    for s in range(2, NS): dma(s)
    if OPT['pf'] and kind < 3:
        code_prefetch(a, f'k{kind+4}_kernel', f'L_g{kind+1}_end', 10, 12, 40 if not diag else 64, vL)
    def lloop(lbl, iters):
        a(f's_mov_b32 s39, {iters}')
        a(f'{lbl}:')
        for s in range(NS):
            a(f's_waitcnt vmcnt({NPER*(NS-2)})')
            a('s_barrier')
            dma(s)
        a('s_sub_u32 s39, s39, 1'); a('s_cmp_lg_u32 s39, 0'); a(f's_cbranch_scc1 {lbl}')
    if kind == 1:
        lloop(f'{P}lloopA', (16 - NS)//NS)
        a(f's_mov_b32 s{sKT}, 0'); a(f's_mov_b32 s{sKF}, s37')
        lloop(f'{P}lloopB', 16//NS)
    else:
        lloop(f'{P}lloop', (NSTEP - NS)//NS)
    for s in range(NS - 1):
        a(f's_waitcnt vmcnt({NPER*max(NS-2-s, 0)})')
        a('s_barrier')
    a('s_endpgm')
    a(f'{P}compute:')
    a.clear_prot()
    if prio: a(f's_setprio {prio}')
    TF = [[16, 20], [24, 28]]
    FF = [[32 + 4*u for u in range(NU)], [60 + 4*u for u in range(NU)]]
    ACC = [88, 144]
    X0 = 200
    acc = lambda p, mt, u: ACC[p] + (mt*NU+u)*4
    vTR = [[8, 9], [10, 11]]; vFR = [12, 13]
    a(f's_lshl_b32 s39, s{sW}, 5')
    a(f'v_and_b32 v1, 15, v{vL}')
    a(f'v_lshrrev_b32 v7, 2, v1'); a(f'v_lshlrev_b32 v7, 3, v7')
    a(f'v_and_b32 v15, 3, v1'); a(f'v_add_u32 v7, v7, v15')
    a(f'v_add_u32 v7, s39, v7')
    a(f's_lshl_b32 s38, s{sTB}, 7')
    a(f'v_add_u32 v2, s38, v7')
    if kind != 3:
        a(f'v_lshlrev_b32 v7, 7, v7')
        a(f'v_lshrrev_b32 v1, 1, v1'); a(f'v_lshrrev_b32 v15, 4, v{vL}')
        a(f'v_xor_b32 v1, v1, v15'); a(f'v_lshlrev_b32 v1, 4, v1')
        a(f'v_add_u32 v{vTR[0][0]}, v7, v1')
        a(f'v_xor_b32 v{vTR[0][1]}, 64, v{vTR[0][0]}')
        a(f'v_add_u32 v{vTR[1][0]}, {2*SLOT}, v{vTR[0][0]}')
        a(f'v_add_u32 v{vTR[1][1]}, {2*SLOT}, v{vTR[0][1]}')
    else:
        a(f'v_lshlrev_b32 v{vTR[0][0]}, 3, v{vL}'); a(f's_lshl_b32 s38, s{sW}, 12'); a(f'v_add_u32 v{vTR[0][0]}, s38, v{vTR[0][0]}')
    a(f'v_lshlrev_b32 v{vFR[0]}, 4, v{vL}')
    a(f'v_add_u32 v{vFR[0]}, {FEAT}, v{vFR[0]}')
    a(f'v_add_u32 v{vFR[1]}, {2*SLOT}, v{vFR[0]}')
    for p in range(2 if kind == 1 else 1):
        for i in range(2*NU*4): a(f'v_mov_b32 v{ACC[p]+i}, 0')
    a('s_waitcnt lgkmcnt(0)')
    if kind != 3:
        a(f's_lshl_b32 s38, s{sTB}, 2'); a(f's_add_u32 s38, s38, s{sW}'); a(f's_mul_i32 s38, s38, {2*112}')
        a(f's_mul_i32 s39, s{sFB}, 7'); a('s_add_u32 s38, s38, s39'); a('s_lshl_b32 s36, s38, 9')
        a(f's_add_u32 s37, s36, {112*512}')
        a(f'v_lshlrev_b32 v6, 3, v{vL}')
    if kind == 1:
        srd_ws(a, S_O, 4, WS_Z1, SZ_Z); srd_ws(a, S_A, 4, WS_Z2N, SZ_Z); srd_ws(a, S_B, 4, WS_ST, 16*16*128*8)
    elif kind == 2:
        srd_ws(a, S_A, 4, WS_Z1, SZ_Z); srd_ws(a, S_O, 4, WS_P, SZ_Z); srd(a, S_B, 46, 4096)
        a(f'v_lshlrev_b32 v2, 1, v2')
        a(f'buffer_load_ushort v4, v2, s[{S_B}:{S_B+3}], 0 offen')
        a(f'buffer_load_ushort v5, v2, s[{S_B}:{S_B+3}], 0 offen offset:8')
    else:
        srd_ws(a, S_A, 4, WS_H, 4*MB); srd(a, S_O, 44, 4*MB)
        a(f'v_lshlrev_b32 v2, 11, v2'); a(f'v_lshrrev_b32 v1, 4, v{vL}'); a(f'v_lshlrev_b32 v1, 4, v1'); a(f'v_add_u32 v2, v2, v1')
        a(f's_lshl_b32 s38, s{sFB}, 7'); a(f'v_add_u32 v2, s38, v2')
    def reads(slot, kappa, buf):
        sg, so = slot >> 1, (slot & 1) * SLOT
        r = []
        def tok(mt):
            if kind != 3:
                return f'ds_read_b128 v[{TF[buf][mt]}:{TF[buf][mt]+3}], v{vTR[sg][kappa]} offset:{so + mt*512}'
            o = (slot*SLOT + TOK + mt*2048 + kappa*1024)//512
            return f'ds_read2st64_b64 v[{TF[buf][mt]}:{TF[buf][mt]+3}], v{vTR[0][0]} offset0:{o} offset1:{o+1}'
        fe = lambda u: f'ds_read_b128 v[{FF[buf][u]}:{FF[buf][u]+3}], v{vFR[sg]} offset:{so + (kappa*NU+u)*1024}'
        r += [tok(0), fe(0), tok(1)] + [fe(u) for u in range(1, NU)]
        return r
    def mfmas(buf, p=0, transposed=False):
        r = []
        for u in range(NU):
            for mt in range(2):
                d = acc(p, mt, u)
                x, y = (TF[buf][mt], FF[buf][u]) if transposed else (FF[buf][u], TF[buf][mt])
                r.append(f'{MF16} v[{d}:{d+3}], v[{x}:{x+3}], v[{y}:{y+3}], v[{d}:{d+3}]')
        return r
    a('s_barrier')
    if diag: stamp(a, 42)
    for r in reads(0, 0, 0): a(r)
    def step(slot, p=0, tr=False, bar=True, pre=True, extra=[]):
        a('s_waitcnt lgkmcnt(0)')
        for ins in interleave(mfmas(0, p, tr), reads(slot, 1, 1)): a(ins)
        a('s_waitcnt lgkmcnt(0)')
        if bar: a('s_barrier')
        for ins in interleave(mfmas(1, p, tr), (reads((slot + 1) % NS, 0, 0) if pre else []) + extra): a(ins)
    def cloop(lbl, iters, p, tr):
        a(f's_mov_b32 s39, {iters}')
        a(f'{lbl}:')
        for s in range(NS): step(s, p, tr)
        a('s_sub_u32 s39, s39, 1'); a('s_cmp_lg_u32 s39, 0'); a(f's_cbranch_scc1 {lbl}')
    if kind == 1:
        vC0, vOne, sC1 = 2, 4, 44
        cloop(f'{P}loopA', 16//NS, 0, True)
        a(f'v_mov_b32 v{vC0}, {fconst(GC0)}'); a(f'v_mov_b32 v{vC0+1}, {fconst(GC0)}')
        a(f'v_mov_b32 v{vOne}, 1.0'); a(f'v_mov_b32 v{vOne+1}, 1.0')
        a(f's_mov_b32 s{sC1}, {fconst(GC1)}'); a(f's_mov_b32 s{sC1+1}, {fconst(GC1)}')
        a('s_nop 7')
        TMP = X0
        ST = X0 + 16
        for u in range(NU):
            prs = [acc(0, mt, u) + o for mt in range(2) for o in (0, 2)]
            gelu_pairs(a, prs, TMP, sC1, vC0, vOne)
            for i, x in enumerate(prs): a(f'v_cvt_pk_bf16_f32 v{TMP+i}, v{x}, v{x+1}')
            for i, x in enumerate(prs):
                a(f'v_lshlrev_b32 v{x}, 16, v{TMP+i}'); a(f'v_and_b32 v{x+1}, 0xffff0000, v{TMP+i}')
            for mt in range(2):
                for r in range(4):
                    e = 4*mt + r; x = acc(0, mt, u) + r
                    if u == 0:
                        a(f'v_mov_b32 v{ST+2*e}, v{x}'); a(f'v_mul_f32 v{ST+2*e+1}, v{x}, v{x}')
                    else:
                        a(f'v_add_f32 v{ST+2*e}, v{ST+2*e}, v{x}'); a(f'v_fmac_f32 v{ST+2*e+1}, v{x}, v{x}')
        a('s_nop 1')
        rr(a, [row16_reduce(ST+i) for i in range(16)])
        a(f's_lshl_b32 s38, s{sTB}, 4'); a(f's_add_u32 s38, s38, s{sFB}'); a('s_lshl_b32 s38, s38, 10')
        a(f's_lshl_b32 s39, s{sW}, 8'); a('s_add_u32 s46, s38, s39')
        a(f'v_lshrrev_b32 v7, 4, v{vL}'); a('v_lshlrev_b32 v7, 6, v7')
        a(f'v_and_b32 v1, 15, v{vL}'); a('v_cmp_eq_u32 vcc, 0, v1')
        a('s_and_saveexec_b64 s[42:43], vcc') if not diag else a('s_and_saveexec_b64 s[50:51], vcc')
        for i in range(4):
            a(f'buffer_store_dwordx4 v[{ST+4*i}:{ST+4*i+3}], v7, s[{S_B}:{S_B+3}], s46 offen offset:{16*i} sc1')
        a('s_mov_b64 exec, -1')
        cloop(f'{P}loopB', (16 - NS)//NS, 1, False)
        for s in range(NS): step(s, 1, False, bar=(s != NS-1), pre=(s != NS-1))
        if diag: stamp(a, 44+8)
        a(f's_lshl_b32 s38, s{sTB}, 14'); a(f's_lshl_b32 s39, s{sW}, 8'); a('s_add_u32 s46, s38, s39')
        a(f'v_and_b32 v1, 15, v{vL}'); a('v_lshlrev_b32 v1, 10, v1'); a('v_add_u32 v7, v7, v1')
        a('s_movk_i32 s47, 20000')
        a(f'{P}poll:')
        for i in range(4):
            a(f'buffer_load_dwordx4 v[{ST+4*i}:{ST+4*i+3}], v7, s[{S_B}:{S_B+3}], s46 offen offset:{16*i} sc1')
        a('s_waitcnt vmcnt(0)')
        a(f'v_cmp_eq_u32 vcc, {SENT}, v{ST+1}')
        for e in range(1, 8):
            a(f'v_cmp_eq_u32 s[38:39], v{ST+2*e+1}, v15') if False else None
        a(f'v_mov_b32 v15, {SENT}')
        for e in range(1, 8):
            a(f'v_cmp_eq_u32 s[38:39], v{ST+2*e+1}, v15'); a('s_nop 0'); a('s_or_b64 vcc, vcc, s[38:39]')
        a(f's_cbranch_vccz {P}polled')
        a('s_sleep 2')
        a('s_sub_u32 s47, s47, 1'); a('s_cmp_lg_u32 s47, 0')
        a(f's_cbranch_scc1 {P}poll')
        a(f'{P}polled:')
        rr(a, [row16_reduce(ST+i) for i in range(16)])
        ch = []
        for e in range(8):
            m, q = ST+2*e, ST+2*e+1
            t = TMP + e
            ch.append([f'v_mul_f32 v{m}, {fconst(1/1792)}, v{m}',
                       f'v_mul_f32 v{q}, {fconst(1/1792)}, v{q}',
                       f'v_fma_f32 v{q}, -v{m}, v{m}, v{q}',
                       f'v_max_f32 v{q}, 0, v{q}',
                       f'v_cvt_pk_bf16_f32 v{t}, v{q}, v{m}',
                       f'v_and_b32 v{m}, 0xffff0000, v{t}',
                       f'v_lshlrev_b32 v{q}, 16, v{t}',
                       f'v_add_f32 v{q}, {fconst(1e-5)}, v{q}',
                       f'v_cvt_pk_bf16_f32 v{q}, v{q}, v{q}',
                       f'v_lshlrev_b32 v{q}, 16, v{q}',
                       f'v_sqrt_f32 v{q}, v{q}',
                       f'v_cvt_pk_bf16_f32 v{q}, v{q}, v{q}',
                       f'v_lshlrev_b32 v{q}, 16, v{q}',
                       f'v_rcp_f32 v{q}, v{q}'])
        rr(a, ch)
        a('s_nop 0')
        a(f's_lshl_b32 s38, s{sFB}, 6'); a(f's_lshl_b32 s39, s{sTB}, 2'); a('s_add_u32 s38, s38, s39'); a(f's_add_u32 s38, s38, s{sW}')
        a('s_mul_i32 s46, s38, 7168')
        a(f'v_lshlrev_b32 v7, 4, v{vL}')
        for u in range(NU):
            for mt in range(2):
                for r in range(4):
                    e = 4*mt + r; x = acc(0, mt, u) + r
                    a(f'v_sub_f32 v{x}, v{x}, v{ST+2*e}')
            for mt in range(2):
                for o in (0, 2):
                    x = acc(0, mt, u) + o
                    a(f'v_cvt_pk_bf16_f32 v{TMP+2*mt+(o>>1)}, v{x}, v{x+1}')
            for mt in range(2):
                for o in (0, 2):
                    x = acc(0, mt, u) + o; t = TMP+2*mt+(o>>1); e = 4*mt + o
                    a(f'v_lshlrev_b32 v{x}, 16, v{t}'); a(f'v_and_b32 v{x+1}, 0xffff0000, v{t}')
                    a(f'v_mul_f32 v{x}, v{x}, v{ST+2*e+1}'); a(f'v_mul_f32 v{x+1}, v{x+1}, v{ST+2*(e+1)+1}')
            d = TMP + 4 + (u & 1)*4
            for mt in range(2):
                for o in (0, 2):
                    x = acc(0, mt, u) + o
                    a(f'v_cvt_pk_bf16_f32 v{d+2*mt+(o>>1)}, v{x}, v{x+1}')
            a(f's_add_u32 s38, s46, {u*1024}')
            a(f'buffer_store_dwordx4 v[{d}:{d+3}], v7, s[{S_A}:{S_A+3}], s38 offen' + stf())
        for u in range(NU):
            prs = [acc(1, mt, u) + o for mt in range(2) for o in (0, 2)]
            gelu_pairs(a, prs, TMP, sC1, vC0, vOne)
            for mt in range(2):
                x = acc(1, mt, u); d = ST + ((u*2+mt) & 7)*2
                a(f'v_cvt_pk_bf16_f32 v{d}, v{x}, v{x+1}'); a(f'v_cvt_pk_bf16_f32 v{d+1}, v{x+2}, v{x+3}')
                a(f'buffer_store_dwordx2 v[{d}:{d+1}], v6, s[{S_O}:{S_O+3}], s{36+mt} offen offset:{u*512}' + stf())
    elif kind == 2:
        ZR = 144
        cloop(f'{P}loop', (NSTEP - NS)//NS, 0, False)
        zl = []
        for mt in range(2):
            for u in range(7):
                z = ZR + (mt*7+u)*2
                zl.append(f'buffer_load_dwordx2 v[{z}:{z+1}], v6, s[{S_A}:{S_A+3}], s{36+mt} offen offset:{u*512}')
        for s in range(NS):
            step(s, 0, False, bar=(s != NS-1), pre=(s != NS-1), extra=zl[s*5:(s+1)*5] if s < 3 else [])
        if diag: stamp(a, 52)
        a('s_waitcnt vmcnt(0)')
        a('v_lshlrev_b32 v4, 16, v4'); a('v_lshlrev_b32 v5, 16, v5')
        for mt in range(2):
            for u in range(7):
                z = ZR + (mt*7+u)*2; d = acc(0, mt, u); b = 4 + mt
                a(f'v_cvt_pk_bf16_f32 v8, v{d}, v{d+1}'); a(f'v_cvt_pk_bf16_f32 v9, v{d+2}, v{d+3}')
                a(f'v_lshlrev_b32 v{d}, 16, v8'); a(f'v_and_b32 v{d+1}, 0xffff0000, v8')
                a(f'v_lshlrev_b32 v{d+2}, 16, v9'); a(f'v_and_b32 v{d+3}, 0xffff0000, v9')
                for r in range(4): a(f'v_add_f32 v{d+r}, v{d+r}, v{b}')
                a(f'v_cvt_pk_bf16_f32 v8, v{d}, v{d+1}'); a(f'v_cvt_pk_bf16_f32 v9, v{d+2}, v{d+3}')
                a(f'v_lshlrev_b32 v{d}, 16, v8'); a(f'v_and_b32 v{d+1}, 0xffff0000, v8')
                a(f'v_lshlrev_b32 v{d+2}, 16, v9'); a(f'v_and_b32 v{d+3}, 0xffff0000, v9')
                a(f'v_lshlrev_b32 v8, 16, v{z}'); a(f'v_and_b32 v9, 0xffff0000, v{z}')
                a(f'v_lshlrev_b32 v10, 16, v{z+1}'); a(f'v_and_b32 v11, 0xffff0000, v{z+1}')
                a(f'v_pk_mul_f32 v[{d}:{d+1}], v[{d}:{d+1}], v[8:9]'); a(f'v_pk_mul_f32 v[{d+2}:{d+3}], v[{d+2}:{d+3}], v[10:11]')
                a(f'v_cvt_pk_bf16_f32 v{z}, v{d}, v{d+1}'); a(f'v_cvt_pk_bf16_f32 v{z+1}, v{d+2}, v{d+3}')
                a(f'buffer_store_dwordx2 v[{z}:{z+1}], v6, s[{S_O}:{S_O+3}], s{36+mt} offen offset:{u*512}' + stf())
    else:
        HR = 144
        cloop(f'{P}loop', (NSTEP - NS)//NS, 0, False)
        hl = []
        for mt in range(2):
            for p in range(2):
                h = HR + (mt*2+p)*4
                hl.append(f'buffer_load_dwordx4 v[{h}:{h+3}], v2, s[{S_A}:{S_A+3}], 0 offen offset:{p*64}' if mt == 0 else
                          f'buffer_load_dwordx4 v[{h}:{h+3}], v2, s[{S_A}:{S_A+3}], s37 offen offset:{p*64}')
        a('s_movk_i32 s37, 8192')
        for s in range(NS):
            step(s, 0, False, bar=(s != NS-1), pre=(s != NS-1), extra=hl if s == 0 else [])
        if diag: stamp(a, 52)
        a('s_waitcnt vmcnt(0)')
        a('s_nop 7')
        for mt in range(2):
            for p in range(2):
                h = HR + (mt*2+p)*4
                for uu in range(2):
                    d = acc(0, mt, 2*p+uu)
                    a(f'v_cvt_pk_bf16_f32 v8, v{d}, v{d+1}'); a(f'v_cvt_pk_bf16_f32 v9, v{d+2}, v{d+3}')
                    a(f'v_lshlrev_b32 v{d}, 16, v8'); a(f'v_and_b32 v{d+1}, 0xffff0000, v8')
                    a(f'v_lshlrev_b32 v{d+2}, 16, v9'); a(f'v_and_b32 v{d+3}, 0xffff0000, v9')
                    a(f'v_lshlrev_b32 v8, 16, v{h+2*uu}'); a(f'v_and_b32 v9, 0xffff0000, v{h+2*uu}')
                    a(f'v_lshlrev_b32 v10, 16, v{h+2*uu+1}'); a(f'v_and_b32 v11, 0xffff0000, v{h+2*uu+1}')
                    a(f'v_pk_add_f32 v[{d}:{d+1}], v[{d}:{d+1}], v[8:9]'); a(f'v_pk_add_f32 v[{d+2}:{d+3}], v[{d+2}:{d+3}], v[10:11]')
                    a(f'v_cvt_pk_bf16_f32 v{h+2*uu}, v{d}, v{d+1}'); a(f'v_cvt_pk_bf16_f32 v{h+2*uu+1}, v{d+2}, v{d+3}')
                so = '0' if mt == 0 else 's37'
                a(f'buffer_store_dwordx4 v[{h}:{h+3}], v2, s[{S_O}:{S_O+3}], {so} offen offset:{p*64}')
    if diag:
        a('s_waitcnt vmcnt(0)')
        stamp(a, 54); a('s_memrealtime s[62:63]')
        a('s_waitcnt lgkmcnt(0)')
        srd_ws(a, 56, 4, WS_DIAG + (kind+2)*131072, 131072)
        a('s_sub_u32 s42, s42, s40'); a('s_sub_u32 s52, s52, s40'); a('s_sub_u32 s54, s54, s40')
        a('v_mov_b32 v8, s42'); a('v_mov_b32 v9, s52'); a('v_mov_b32 v10, s54'); a('v_mov_b32 v11, s40')
        a('v_mov_b32 v12, s60'); a('v_mov_b32 v13, s62'); a('v_mov_b32 v14, 0'); a('v_mov_b32 v15, 0')
        a(f's_lshl_b32 s38, s2, 2'); a(f's_add_u32 s38, s38, s{sW}'); a('s_lshl_b32 s38, s38, 5')
        a('v_mov_b32 v3, s38')
        a('buffer_store_dwordx4 v[8:11], v3, s[56:59], 0 offen')
        a('buffer_store_dwordx4 v[12:15], v3, s[56:59], 0 offen offset:16')
    a(f'{P}end:')
    a('s_endpgm')
    nv = {1: 240, 2: 176, 3: 160}[kind]
    return dict(name=f'k{kind+3}_kernel', body=a.text(), grid=256, block=512, lds=NS*SLOT, vgpr=nv, acc=nv, sgpr=80)

if __name__ == '__main__':
    for k in (1, 2, 3):
        open(f'k{k+3}.s', 'w').write(module([gen_gemm(k, diag=True)]))
```

```python
import sys
from gen_common import *
import gen_fft, gen_gemm
HEADER = '''; sequential_preLN -> GFNet spectral filter -> preLN -> gMLP, as a list of six launches.
'''
def build(diag=False):
    ks = [gen_fft.gen_k1(diag=diag), gen_fft.gen_k2(diag=diag), gen_fft.gen_k3(diag=diag)] + [gen_gemm.gen_gemm(k, diag=diag) for k in (1, 2, 3)]
    return module(ks, header=HEADER)
if __name__ == '__main__':
    out = sys.argv[1] if len(sys.argv) > 1 else 'sequential_preLN__spectral_gfnet__mixer_gmlp__prompt.s'
    for x in sys.argv[2:]:
        if '=' in x:
            k, v = x.split('=', 1); OPT[k] = {'0': False, '1': True}.get(v, v)
    txt = build(diag=('diag' in sys.argv))
    open(out, 'w').write(txt)
    print(len(txt), 'bytes')
```

```python
from asmlib import Asm, srd, module
MB = 1 << 20
WS_XD, WS_YD, WS_WT, WS_H, WS_HN = 0, 4*MB, 8*MB, 12*MB, 16*MB
WS_Z1, WS_Z2N, WS_P, WS_ST, WS_DIAG = 20*MB, 28*MB, 36*MB, 44*MB, 48*MB
SZ_Z = 2048*1792*2
KA = dict(x=0, wr=8, wi=16, bx=24, win=32, wsp=40, bsp=48, wout=56, out=64, dbg=72, ws=80)

def srd_ws(a, dst, wsbase, off, nbytes):
    a(f's_add_u32 s{dst}, s{wsbase}, {off}')
    a(f's_addc_u32 s{dst+1}, s{wsbase+1}, 0')
    a(f's_and_b32 s{dst+1}, s{dst+1}, 0xffff')
    a(f's_mov_b32 s{dst+2}, {nbytes}')
    a(f's_mov_b32 s{dst+3}, 0x20000')
    a.prot.update(range(dst, dst+4))

def interleave(main, fill, start=0, per=1):
    out = []
    fi = 0
    for i, m in enumerate(main):
        out.append(m)
        if i >= start:
            for _ in range(per):
                if fi < len(fill):
                    out.extend(fill[fi] if isinstance(fill[fi], list) else [fill[fi]]); fi += 1
    while fi < len(fill):
        out.extend(fill[fi] if isinstance(fill[fi], list) else [fill[fi]]); fi += 1
    return out

def stamp(a, sreg):
    a(f's_memtime s[{sreg}:{sreg+1}]')

WS_WINP, WS_WOUTP = 52*MB, 60*MB
SZ_WINP, SZ_WOUTP = 1024*3584*2, 1792*1024*2

def rr(a, chains, gap=3):
    n = max(len(c) for c in chains)
    for i in range(n):
        cnt = 0
        for c in chains:
            if i < len(c): a(c[i]); cnt += 1
        if i < n - 1 and cnt < gap: a(f's_nop {gap - cnt - 1}')

def reduce_chain(v):
    return [f'v_add_f32_dpp v{v}, v{v}, v{v} row_ror:8 row_mask:0xf bank_mask:0xf',
            f'v_add_f32_dpp v{v}, v{v}, v{v} row_ror:4 row_mask:0xf bank_mask:0xf',
            f'v_add_f32_dpp v{v}, v{v}, v{v} row_ror:2 row_mask:0xf bank_mask:0xf',
            f'v_add_f32_dpp v{v}, v{v}, v{v} row_ror:1 row_mask:0xf bank_mask:0xf',
            f'v_add_f32_dpp v{v}, v{v}, v{v} row_bcast:15 row_mask:0xa bank_mask:0xf',
            f'v_add_f32_dpp v{v}, v{v}, v{v} row_bcast:31 row_mask:0xc bank_mask:0xf']

def fconst(x):
    import struct
    return '0x%08x' % struct.unpack('<I', struct.pack('<f', x))[0]

def gen_cos_pairs(a, dsts, angle_fn, t0, t1):
    for i, d in enumerate(dsts):
        angle_fn(2*i, t0); angle_fn(2*i+1, t1)
        a(f'v_cos_f32 v{t0}, v{t0}'); a(f'v_cos_f32 v{t1}, v{t1}')
        a('s_nop 0')
        a(f'v_cvt_pk_bf16_f32 v{d}, v{t0}, v{t1}')


class Diag:
    def __init__(self, a, on, kid, base=64):
        self.a, self.on, self.kid, self.base, self.n = a, on, kid, base, 0
    def start(self):
        if not self.on: return
        self.a(f's_memtime s[{self.base}:{self.base+1}]'); self.a(f's_memrealtime s[{self.base+2}:{self.base+3}]'); self.n = 0
    def mark(self):
        if not self.on: return
        r = self.base + 6 + 2*self.n; self.n += 1
        self.a(f's_memtime s[{r}:{r+1}]')
    def dump(self, wsreg, sW, vt=2, nwave_shift=2):
        if not self.on: return
        a = self.a; b = self.base
        a('s_waitcnt vmcnt(0)')
        r = b + 6 + 2*self.n
        a(f's_memtime s[{r}:{r+1}]'); a(f's_memrealtime s[{b+4}:{b+5}]')
        a('s_waitcnt lgkmcnt(0)')
        a.prot -= set(range(96, 100))
        srd_ws(a, 96, wsreg, WS_DIAG + self.kid*131072, 131072)
        n = self.n + 1
        assert n <= 6
        for i in range(8): a(f'v_mov_b32 v{vt+i}, 0')
        for i in range(n):
            a(f's_sub_u32 s{b+6+2*i}, s{b+6+2*i}, s{b}'); a(f'v_mov_b32 v{vt+i}, s{b+6+2*i}')
        a(f'v_mov_b32 v{vt+6}, s{b+2}'); a(f'v_mov_b32 v{vt+7}, s{b+4}')
        a(f's_lshl_b32 s{b}, s2, {nwave_shift}'); a(f's_add_u32 s{b}, s{b}, s{sW}'); a(f's_lshl_b32 s{b}, s{b}, 5')
        a(f'v_mov_b32 v{vt+8}, s{b}')
        a(f'buffer_store_dwordx4 v[{vt}:{vt+3}], v{vt+8}, s[96:99], 0 offen')
        a(f'buffer_store_dwordx4 v[{vt+4}:{vt+7}], v{vt+8}, s[96:99], 0 offen offset:16')

_pfid = [0]
def code_prefetch(a, start, end, vA, vD, sP, vL, wave_off=None, backward=False):
    _pfid[0] += 1
    L = f'L_pf{_pfid[0]}'
    a(f's_getpc_b64 s[{sP}:{sP+1}]')
    a(f'{L}:')
    a(f's_add_u32 s{sP}, s{sP}, {start}-{L}')
    a(f's_addc_u32 s{sP+1}, s{sP+1}, {-1 if backward else 0}')
    a(f'v_lshlrev_b32 v{vA}, 7, v{vL}')
    if wave_off is not None:
        a(f's_lshl_b32 s{sP+2}, s{wave_off[0]}, 13'); a(f'v_add_u32 v{vA}, s{sP+2}, v{vA}')
    a(f'v_min_u32 v{vA}, {end}-{start}-4, v{vA}')
    a(f'v_mov_b32 v{vA+1}, s{sP+1}')
    a(f'v_add_co_u32 v{vA}, s[{sP+2}:{sP+3}], s{sP}, v{vA}')
    a('s_nop 1')
    a(f'v_addc_co_u32 v{vA+1}, s[{sP+2}:{sP+3}], 0, v{vA+1}, s[{sP+2}:{sP+3}]')
    a(f'global_load_dword v{vD}, v[{vA}:{vA+1}], off')

OPT = dict(st='', pf=True)
def stf(): return (' ' + OPT['st']) if OPT['st'] else ''
```
